```python
import torch

def _softmax(x, axis=-1):
    return torch.softmax(x, dim=axis)
def _gelu(x):
    return torch.nn.functional.gelu(x, approximate="tanh")
def _silu(x):
    return torch.nn.functional.silu(x)
def _sigmoid(x):
    return torch.sigmoid(x)
def _layernorm(x, axis=-1, eps=1e-5):
    m = x.mean(dim=axis, keepdim=True)
    v = x.var(dim=axis, keepdim=True, unbiased=False)
    return (x - m) / torch.sqrt(v + eps)
def _scatter_add(tgt, idx, src, axis=0):
    return tgt.clone().index_add_(axis, idx, src)
def _segment_sum(src, seg, n):
    out = torch.zeros((n,) + src.shape[1:], dtype=src.dtype)
    return out.index_add_(0, seg, src)
def _pad(x, pw):
    flat = tuple(v for pair in reversed(pw) for v in pair)
    return torch.nn.functional.pad(x, flat)

kernel_name = 'sequential_preLN__sliding_block__mixer_token_mlp__prompt'

def setup_inputs():

    _w = (lambda a: (lambda t: t.to(torch.bfloat16) if t.is_floating_point() else t)(torch.as_tensor(a)))
    def _A_setup():
        B, S, D = 1, 2048, 640
        return {
            "x": _w((lambda *s: torch.randn(*s, dtype=torch.bfloat16) * 0.05)(B, S, D)),
            "wqkv": _w((lambda *s: torch.randn(*s, dtype=torch.bfloat16) * 0.05)(D, 3 * D)),
            "wo": _w((lambda *s: torch.randn(*s, dtype=torch.bfloat16) * 0.05)(D, D)),
        }
    _A_in = _A_setup()

    def _B_setup():
        B, S, D, F = 1, 2048, 640, 1728
        return {
            "x": _w((lambda *s: torch.randn(*s, dtype=torch.bfloat16) * 0.05)(B, S, D)),
            "w1": _w((lambda *s: torch.randn(*s, dtype=torch.bfloat16) * 1.6)(S, F) * (S ** -0.5)),
            "b1": _w((lambda *s: torch.randn(*s, dtype=torch.bfloat16) * 12.8)(F) * 0.02),
            "w2": _w((lambda *s: torch.randn(*s, dtype=torch.bfloat16) * 0.8)(F, S) * (F ** -0.5)),
            "b2": _w((lambda *s: torch.randn(*s, dtype=torch.bfloat16) * 12.8)(S) * 0.02),
        }
    _B_in = _B_setup()

    return {
        "A_x": _A_in["x"],
        "A_wqkv": _A_in["wqkv"],
        "A_wo": _A_in["wo"],
        "B_x": _B_in["x"],
        "B_w1": _B_in["w1"],
        "B_b1": _B_in["b1"],
        "B_w2": _B_in["w2"],
        "B_b2": _B_in["b2"],
    }

def reference(A_x, A_wqkv, A_wo, B_x, B_w1, B_b1, B_w2, B_b2):
    def _A_ref(x, wqkv, wo):
        B, S, D = x.shape
        H = 32; Dh = D // H; W = 256
        qkv = (lambda x, *d: x.permute(*d))((x @ wqkv).reshape(B, S, 3, H, Dh), 2, 0, 3, 1, 4)
        q, k, v = qkv[0], qkv[1], qkv[2]
        scores = torch.einsum("bhqd,bhkd->bhqk", q, k) * (Dh ** -0.5)
        idx = torch.arange(S)
        mask = (idx[:, None] - idx[None, :] >= 0) & (idx[:, None] - idx[None, :] < W)
        scores = torch.where(mask[None, None], scores, -1e9)
        p = _softmax(scores, axis=-1)
        o = torch.einsum("bhqk,bhkd->bhqd", p, v)
        return (lambda x, *d: x.permute(*d))(o, 0, 2, 1, 3).reshape(B, S, D) @ wo

    def _B_ref(x, w1, b1, w2, b2):
        B, S, D = x.shape
        h = _layernorm(x, axis=-1)
        u = torch.einsum("bsd,sf->bdf", h, w1) + b1
        u = _gelu(u)
        y = torch.einsum("bdf,fs->bds", u, w2) + b2
        return (lambda x, *d: x.permute(*d))(y, 0, 2, 1)

    x = A_x
    h = x + _A_ref(_layernorm(x, axis=-1), A_wqkv, A_wo)
    h2 = h + _B_ref(_layernorm(h, axis=-1), B_w1, B_b1, B_w2, B_b2)
    return h2
```

```python
import re, copy

TRANS = ("v_exp_f32", "v_log_f32", "v_rcp_f32", "v_rsq_f32", "v_sqrt_f32", "v_sin_f32", "v_cos_f32")

def regs_of(op):
    op = op.strip()
    if op.startswith("-"): op = op[1:]
    m = re.fullmatch(r"abs\((.*)\)", op)
    if m: op = m.group(1)
    if op.startswith("|"): op = op.strip("|")
    m = re.fullmatch(r"([vas])(\d+)", op)
    if m: return [(m.group(1), int(m.group(2)))]
    m = re.fullmatch(r"([vas])\[(\d+):(\d+)\]", op)
    if m: return [(m.group(1), i) for i in range(int(m.group(2)), int(m.group(3)) + 1)]
    if op == "vcc": return [("s", "vcc_lo"), ("s", "vcc_hi")]
    if op == "exec": return [("s", "exec_lo"), ("s", "exec_hi")]
    if op in ("vcc_lo", "vcc_hi", "exec_lo", "exec_hi", "m0"): return [("s", op)]
    return []

def split_ops(s):
    out, depth, cur = [], 0, ""
    for ch in s:
        if ch in "[(": depth += 1
        if ch in "])": depth -= 1
        if ch == "," and depth == 0:
            out.append(cur.strip()); cur = ""
        else: cur += ch
    if cur.strip(): out.append(cur.strip())
    return out

class Ins:
    def __init__(self, text):
        self.text = text
        t = text.split(";")[0].strip()
        parts = t.split(None, 1)
        self.op = op = parts[0]
        rest = parts[1] if len(parts) > 1 else ""
        ops = split_ops(rest)
        mods = ""
        if ops:
            last = ops[-1].split(None, 1)
            ops[-1] = last[0]
            mods = last[1] if len(last) > 1 else ""
        self.ops, self.mods = ops, mods
        R = [regs_of(o) for o in ops]
        self.defs, self.uses = [], []
        self.A = self.B = self.C = self.D = []
        self.passes = 0
        self.states = 1
        self.store_data = []
        self.dma = False
        flat = lambda l: [x for y in l for x in y]
        if op.startswith("v_mfma"):
            self.cls = "mfma"
            self.D, self.A, self.B, self.C = R[0], R[1], R[2], R[3]
            self.defs, self.uses = R[0], R[1] + R[2] + R[3]
            self.passes = 8 if "32x32" in op else (2 if "4x4x4" in op else 4)
        elif op.startswith("v_"):
            self.cls = "valu"
            base = op.replace("_e32", "").replace("_e64", "").replace("_dpp", "").replace("_sdwa", "")
            self.base = base
            if base.startswith("v_cmp"):
                self.defs, self.uses = R[0], flat(R[1:])
            elif base in ("v_swap_b32", "v_permlane32_swap_b32", "v_permlane16_swap_b32"):
                self.defs = self.uses = R[0] + R[1]
            elif base in ("v_add_co_u32", "v_sub_co_u32", "v_addc_co_u32"):
                self.defs, self.uses = R[0] + R[1], flat(R[2:])
            elif base in ("v_fmac_f32", "v_dot2c_f32_bf16", "v_writelane_b32"):
                self.defs, self.uses = R[0], flat(R)
            elif base == "v_nop":
                pass
            else:
                self.defs, self.uses = R[0], flat(R[1:])
            if base.startswith("v_cmpx"): self.defs = self.defs + regs_of("exec")
            self.dpp = "_dpp" in op or "row_" in mods or "quad_perm" in mods
            if self.dpp: self.uses = self.uses + R[0]
            self.trans = base in TRANS
            self.dot = base.startswith("v_dot")
        elif op.startswith("buffer_") or op.startswith("global_"):
            self.cls = "vmem"
            ml = mods.split()
            if op in ("buffer_wbl2", "buffer_inv"):
                pass
            elif "lds" in ml or "_lds_" in op:
                self.dma = True
                self.uses = flat(R) + [("s", "m0")]
            elif "load" in op:
                self.defs, self.uses = R[0], flat(R[1:])
                if "d16" in op: self.uses = self.uses + R[0]
            elif "atomic" in op and "sc0" in ml:
                self.defs, self.uses = R[0], flat(R)
            else:
                self.uses = flat(R)
                if "x3" in op or "x4" in op:
                    self.store_data = R[0] if op.startswith("buffer_") else R[1]
        elif op.startswith("ds_"):
            self.cls = "ds"
            if "read" in op or "permute" in op or "swizzle" in op:
                self.defs, self.uses = R[0], flat(R[1:])
            else:
                self.uses = flat(R)
        elif op.startswith("s_load") or op.startswith("s_buffer_load") or op in ("s_memtime", "s_memrealtime"):
            self.cls = "smem"
            self.defs, self.uses = R[0], flat(R[1:])
        elif op == "s_nop":
            self.cls = "nop"; self.states = int(ops[0], 0) + 1
        elif op in ("s_waitcnt", "s_barrier", "s_endpgm", "s_setprio", "s_sleep", "s_branch") or op.startswith("s_cbranch"):
            self.cls = "ctl"
        elif op.startswith("s_cmp") or op.startswith("s_bitcmp"):
            self.cls = "salu"; self.uses = flat(R)
        elif op.startswith("s_"):
            self.cls = "salu"
            self.defs, self.uses = (R[0] if R else []), flat(R[1:])
            if "saveexec" in op: self.defs = self.defs + regs_of("exec")
            if op in ("s_addk_i32", "s_mulk_i32"): self.uses = self.uses + R[0]
        else:
            raise ValueError("unknown instruction " + text)
        self.dset, self.uset = set(self.defs), set(self.uses)

def need_states(p, c):
    n = 0
    vv = lambda s: {r for r in s if r[0] in "va"}
    ss = lambda s: {r for r in s if r[0] == "s"}
    if p.cls == "valu":
        pv, ps = vv(p.dset), ss(p.dset)
        if c.cls == "mfma" and pv & c.uset: n = max(n, 3 if p.dot else 2)
        if c.cls == "valu":
            if pv & c.uset:
                if p.trans and not c.trans: n = max(n, 1)
                if c.base.startswith("v_permlane") or c.dpp: n = max(n, 2)
                if c.base in ("v_readfirstlane_b32", "v_readlane_b32"): n = max(n, 1)
                if "sdwa" in p.op or "op_sel" in p.mods and not p.base.startswith("v_pk"): n = max(n, 1)
            if p.dot and pv & (c.uset | c.dset):
                same_c = c.dot and c.base == p.base and not (pv & set(sum((regs_of(o) for o in c.ops[1:3]), [])))
                if not same_c: n = max(n, 3)
            if ps & c.uset: n = max(n, 4 if c.base in ("v_readlane_b32", "v_writelane_b32") else 2)
        if p.dot and c.cls in ("vmem", "ds") and pv & c.uset: n = max(n, 3)
        if c.cls == "vmem" and ps & c.uset: n = max(n, 5)
        if c.cls in ("salu", "smem") and ps & c.uset: n = max(n, 1)
    elif p.cls == "mfma":
        big = {2: 5, 4: 8, 8: 12}[p.passes]
        D = p.dset
        if c.cls == "mfma":
            if D & (set(c.A) | set(c.B)): n = max(n, big)
            if D & set(c.C):
                if not (c.C == p.D and c.passes == p.passes): n = max(n, max(big - 2, 4))
                elif p.passes == 2: n = max(n, 2)
            elif D & c.dset: n = max(n, max(big - 2, 4))
        elif c.cls in ("valu", "vmem", "ds"):
            if D & (c.uset | c.dset): n = max(n, big)
            if c.cls == "valu" and set(p.C) & c.dset: n = max(n, p.passes - 1)
    elif p.cls == "salu":
        if ("s", "m0") in p.dset and c.cls == "vmem" and c.dma: n = max(n, 1)
    elif p.cls == "vmem":
        if p.store_data and set(p.store_data) & c.dset: n = max(n, 2 if c.cls == "valu" else 1)
    return n

class K:
    def __init__(self):
        self.out = []
        self.hist = []
        self.vm = []
        self.lg = []
        self.maxv = self.maxa = self.maxs = -1
        self.nops = 0
    def snapshot(self): return (list(self.hist), list(self.vm), list(self.lg))
    def restore(self, s): self.hist, self.vm, self.lg = list(s[0]), list(s[1]), list(s[2])
    def raw(self, text): self.out.append(text)
    def label(self, name): self.out.append(name + ":")
    def comment(self, t): self.out.append("    ; " + t)
    def _push(self, ins):
        self.out.append("    " + ins.text)
        self.hist.append(ins)
        if len(self.hist) > 24: self.hist.pop(0)
    def _wait(self, vm=None, lg=None):
        parts = []
        if vm is not None and vm < len(self.vm):
            vm = min(vm, 63); parts.append(f"vmcnt({vm})")
            self.vm = self.vm[len(self.vm) - vm:] if vm else []
        if lg is not None and lg < len(self.lg):
            if any(e[1] for e in self.lg): lg = 0
            lg = min(lg, 15); parts.append(f"lgkmcnt({lg})")
            self.lg = self.lg[len(self.lg) - lg:] if lg else []
        if parts: self._push(Ins("s_waitcnt " + " ".join(parts)))
    def wait_all(self, vm=True, lg=True): self._wait(0 if vm else None, 0 if lg else None)
    def wait_tag(self, *tags):
        vm = lg = None
        for i, e in enumerate(self.vm):
            if e[1] in tags: vm = len(self.vm) - 1 - i
        for i, e in enumerate(self.lg):
            if e[2] in tags: lg = len(self.lg) - 1 - i
        self._wait(vm, lg)
    def emit(self, text, tag=None):
        ins = Ins(text)
        if ins.op == "s_waitcnt": raise ValueError("use wait helpers")
        touch = ins.uset | ins.dset
        if ins.cls == "vmem" and ins.dset == {("v", 250)}: touch = ins.uset
        vm = lg = None
        for i, e in enumerate(self.vm):
            if e[0] & touch: vm = len(self.vm) - 1 - i
        for i, e in enumerate(self.lg):
            if e[0] & touch: lg = len(self.lg) - 1 - i
        self._wait(vm, lg)
        dist, need = 0, 0
        for p in reversed(self.hist):
            need = max(need, need_states(p, ins) - dist)
            dist += p.states
            if dist > 20: break
        while need > 0:
            n = min(need, 16)
            self._push(Ins(f"s_nop {n-1}")); need -= n; self.nops += n
        self._push(ins)
        if ins.cls == "vmem": self.vm.append((set(ins.dset), tag))
        elif ins.cls == "ds": self.lg.append((set(ins.dset), False, tag))
        elif ins.cls == "smem": self.lg.append((set(ins.dset), True, tag))
        for r in touch:
            if isinstance(r[1], int):
                if r[0] == "v": self.maxv = max(self.maxv, r[1])
                elif r[0] == "a": self.maxa = max(self.maxa, r[1])
                else: self.maxs = max(self.maxs, r[1])
    def __call__(self, text, tag=None):
        for line in text.split("\n"):
            line = line.strip()
            if not line or line.startswith(";"): continue
            if line.endswith(":"): self.label(line[:-1])
            elif line.startswith("@wait "): self.wait_tag(*line.split()[1:])
            elif line == "@lg0": self.wait_all(vm=False)
            elif line == "@vm0": self.wait_all(lg=False)
            else: self.emit(line, tag)
    def run(self, items):
        for it in items:
            if callable(it): it()
            elif isinstance(it, tuple): self(it[0], it[1])
            else: self(it)
    def text(self): return "\n".join(self.out) + "\n"

def interleave(main, fill, per=None, lead=0):
    out, fi = [], 0
    n = len(main)
    out += fill[:lead]; fi = lead
    for i, m in enumerate(main):
        out.append(m)
        if per is None: tgt = lead + ((len(fill) - lead) * (i + 1) + n - 1) // n
        else: tgt = fi + per
        tgt = min(tgt, len(fill))
        out += fill[fi:tgt]; fi = tgt
    out += fill[fi:]
    return out

def v(a, n=1): return f"v{a}" if n == 1 else f"v[{a}:{a+n-1}]"
def a(a_, n=1): return f"a{a_}" if n == 1 else f"a[{a_}:{a_+n-1}]"
def s(a_, n=1): return f"s{a_}" if n == 1 else f"s[{a_}:{a_+n-1}]"

class Alloc:
    def __init__(self, start=0, limit=256): self.p, self.limit = start, limit
    def __call__(self, n=1, align=1):
        self.p = (self.p + align - 1) // align * align
        r = self.p; self.p += n
        assert self.p <= self.limit, "out of registers"
        return r

def kernel_text(name, k, min_vgpr=0):
    nv = max(k.maxv + 1, min_vgpr, 4)
    acc = (nv + 3) // 4 * 4
    tot = acc + k.maxa + 1 if k.maxa >= 0 else nv
    head = f".text\n.globl {name}\n.p2align 8\n.type {name},@function\n{name}:\n"
    desc = f""".section .rodata,"a"
.p2align 6
.amdhsa_kernel {name}
  .amdhsa_next_free_vgpr {tot}
  .amdhsa_next_free_sgpr {min(102, max(k.maxs + 1, 16))}
  .amdhsa_accum_offset {acc}
  .amdhsa_group_segment_fixed_size 0
  .amdhsa_kernarg_size 88
  .amdhsa_user_sgpr_count 2
  .amdhsa_user_sgpr_kernarg_segment_ptr 1
  .amdhsa_system_sgpr_workgroup_id_x 1
  .amdhsa_float_denorm_mode_32 3
.end_amdhsa_kernel
"""
    return head + k.text(), desc

class Group:
    def __init__(self, text):
        sub = [Ins(l.strip()) for l in text.split("\n") if l.strip() and not l.strip().startswith("@")]
        self.cls = "ds" if any(x.cls == "ds" for x in sub) else ("vmem" if any(x.cls == "vmem" for x in sub) else "ctl")
        self.dset = set().union(*[x.dset for x in sub]) if sub else set()
        self.uset = set().union(*[x.uset for x in sub]) if sub else set()
        self.dset = {r for r in self.dset if r[0] != "s" and r != ("v", 250)}; self.uset = {r for r in self.uset if r[0] != "s"}
        self.store_data, self.dma, self.passes, self.n = [], False, 0, len(sub)

def issue_cost(ins):
    if isinstance(ins, Group): return 4 * ins.n
    if ins.cls == "mfma": return 8 if ins.passes > 2 else 8
    if ins.cls == "valu":
        if ins.trans or ins.base in ("v_swap_b32",): return 8
        return 4.5
    return 4

def schedule(items, ready=None, t0=0):
    ready = ready or {}
    N = len(items)
    ins = [Group(it[0]) if ("\n" in it[0] or it[0].startswith("@")) else Ins(it[0]) for it in items]
    preds = [dict() for _ in range(N)]
    lastw, readers = {}, {}
    lastmem = None
    for i, c in enumerate(ins):
        for r in c.uset:
            if r in lastw: preds[i][lastw[r]] = 1
        for r in c.dset:
            if r in lastw: preds[i][lastw[r]] = 1
            for j in readers.get(r, []):
                if j != i: preds[i].setdefault(j, 0)
        if c.cls in ("ds", "vmem", "ctl", "salu"):
            if lastmem is not None: preds[i].setdefault(lastmem, 0)
            lastmem = i
        for r in c.uset: readers.setdefault(r, []).append(i)
        for r in c.dset: lastw[r] = i; readers[r] = []
    succ = [[] for _ in range(N)]
    for i in range(N):
        for j in preds[i]: succ[j].append(i)
    left = [len(p) for p in preds]
    rt = [max([t0, it[3] if len(it) > 3 else 0] + [ready.get(r, t0) for r in (c.uset | c.dset)]) for c, it in zip(ins, items)]
    rs = [0] * N
    avail = [i for i in range(N) if left[i] == 0]
    out, t, pipe, slot = [], t0, t0, 0; schedule.times = []
    while avail:
        cand = [i for i in avail if rt[i] <= t and rs[i] <= slot and (ins[i].cls != "mfma" or pipe <= t + 2)]
        if not cand:
            cand2 = [i for i in avail if rt[i] <= t and (ins[i].cls != "mfma" or pipe <= t + 2)]
            t += 4
            if cand2: slot += 1
            continue
        m = [i for i in cand if ins[i].cls == "mfma"]
        i = min(m or cand, key=lambda x: (items[x][1], x))
        c = ins[i]; avail.remove(i); out.append(items[i]); schedule.times.append((t, items[i][0]))
        if c.cls == "mfma": t = max(t, pipe); pipe = t + 4 * c.passes
        for j in succ[i]:
            d = ins[j]; n = need_states(c, d); lat = 0
            if preds[j][i]:
                if c.cls == "mfma": lat = 0 if (d.cls == "mfma" and n == 0) else 4 * c.passes + 24
                elif c.cls == "ds": lat = 128
                elif c.cls == "vmem": lat = 1000
                elif c.cls == "valu": lat = 8
            rt[j] = max(rt[j], t + lat); rs[j] = max(rs[j], slot + 1 + n)
            left[j] -= 1
            if left[j] == 0: avail.append(j)
        t += issue_cost(c); slot += 1
    assert len(out) == N
    schedule.last_time = t
    return [(it[0], it[2] if len(it) > 2 else None) for it in out]
```

```python
S, D, F, H = 2048, 640, 1728, 32
HS = 245760
R_QM, R_KM, R_V, R_QT, R_KT = 0, 65536, 131072, 212992, 229376
QKV, QKV_SZ = 0, 32 * HS
OF, OF_SZ = 0x800000, 128 * 20 * 1024
HF_SZ = 64 * 40 * 1024
HNF = 0xB00000
UF, UF_SZ = 0xE00000, 54 * 40 * 1024
WOF, WOF_SZ = 0x1100000, 8 * 20 * 5 * 1024
ST, ST_SZ = 0x11D0000, 128 * 1024
SY, SY_SZ = 0x1200000, 2048 * 128
F0, F1, F2, F3, F4 = 768, 0, 1024, 256, 512
TS = 0x1240000
PT, PT_W, PT_SZ = 0x1280000, 163840, 240640
WS_USED = 0x1300000
KA_X, KA_WQKV, KA_WO, KA_W1, KA_B1, KA_W2, KA_B2, KA_OUT, KA_DBG, KA_WS = 0, 8, 16, 32, 40, 48, 56, 64, 72, 80
```

```python
from asm import *
from layout import *

def srd(k, r, src, off, size):
    if off:
        k(f"s_add_u32 s{r}, s{src}, {hex(off)}\ns_addc_u32 s{r+1}, s{src+1}, 0")
    elif src != r:
        k(f"s_mov_b32 s{r}, s{src}\ns_mov_b32 s{r+1}, s{src+1}")
    k(f"s_mov_b32 s{r+2}, {hex(size)}\ns_mov_b32 s{r+3}, 0x20000")

def f32(x):
    import struct
    return hex(struct.unpack("<I", struct.pack("<f", x))[0])

class Stamps:
    def __init__(self, on, kid, base=80):
        self.on, self.kid, self.base, self.n = on, kid, base, 0
    def __call__(self, k):
        if not self.on: return
        if self.n == 0: k("s_memtime s[98:99]")
        k(f"{'s_memtime' if self.on == 2 else 's_memrealtime'} s[{self.base+2*self.n}:{self.base+2*self.n+1}]"); self.n += 1
    def flush(self, k, swave, vt=0):
        if not self.on: return
        self(k)
        k(f"s_load_dwordx2 s[76:77], s[0:1], {KA_WS}")
        k.wait_all()
        self(k)
        k("s_memtime s[100:101]\ns_sub_u32 s100, s100, s98")
        k(f"s_add_u32 s76, s76, {TS + self.kid * 0x10000}\ns_addc_u32 s77, s77, 0\ns_mov_b32 s78, 0x10000\ns_mov_b32 s79, 0x20000")
        k(f"s_lshl_b32 s75, s2, 2\ns_add_u32 s75, s75, s{swave}\ns_lshl_b32 s75, s75, 6")
        k(f"s_mov_b32 exec_lo, 1\ns_mov_b32 exec_hi, 0")
        k(f"v_mov_b32 v{vt}, s75")
        for i in range(self.n):
            k(f"v_mov_b32 v{vt+1+i}, s{self.base+2*i}")
            k(f"buffer_store_dword v{vt+1+i}, v{vt}, s[76:79], 0 offen offset:{4*i}")
        k(f"v_mov_b32 v{vt+12}, s100\nbuffer_store_dword v{vt+12}, v{vt}, s[76:79], 0 offen offset:60")
```

```python
from util import *
import math

def phase_A(c):
    k, opt, st = c.k, c.opt, c.st
    nt = ""; vPF = 251; ta = opt.get("ta", [24, 27, 30, 33]); c.nt = len(ta)
    sRT, sCT, sKX, sKW, sM0X, sM0W, sT, sT2, sBM, sBT, sSC = 28, 29, 30, 31, 32, 33, 34, 35, 42, 43, 46
    k("s_cmp_ge_u32 s2, 256\ns_cbranch_scc1 K_exit")
    k(f"s_load_dwordx4 s[36:39], s[0:1], {KA_X}\ns_load_dwordx2 s[{sWS}:{sWS+1}], s[0:1], {KA_WS}\ns_load_dwordx2 s[24:25], s[0:1], {KA_DBG}")
    k(f"s_load_dwordx2 s[40:41], s[0:1], {KA_WO}\ns_load_dwordx2 s[{WR}:{WR+1}], s[0:1], {KA_W1}\ns_load_dwordx2 s[20:21], s[0:1], {KA_W2}")
    V = Alloc(V0)
    t0, t1, t2, t3, vD, vT = V(), V(), V(), V(), vP + 1, V()
    k(f"v_lshrrev_b32 v{t0}, 6, v0\nv_and_b32 v{vL}, 63, v0\nv_readfirstlane_b32 s{sW}, v{t0}")
    if opt.get("pf_code"):
        k(f"s_getpc_b64 s[44:45]\nv_lshlrev_b32 v{t1}, 7, v0\nv_min_u32 v{t1}, {opt['pf_code'] - 128}, v{t1}\nglobal_load_dword v{vT}, v{t1}, s[44:45]")
    k(f"s_and_b32 s{sXC}, s2, 7\ns_lshr_b32 s{sJ}, s2, 3\nv_lshlrev_b32 v{o16}, 4, v{vL}\nv_mov_b32 v{vP}, 1")
    st(0)
    k(f"s_cmp_ge_u32 s{sJ}, 30\ns_cbranch_scc1 A_prep")
    snap0 = k.snapshot()
    k(f"s_and_b32 s{sRT}, s{sXC}, 1\ns_mul_i32 s{sRT}, s{sRT}, 30\ns_add_u32 s{sT2}, s{sJ}, s{sRT}\ns_lshr_b32 s{sCT}, s{sT2}, 2\ns_and_b32 s{sRT}, s{sT2}, 3\ns_lshr_b32 s{sT}, s{sXC}, 1\ns_lshl2_add_u32 s{sRT}, s{sT}, s{sRT}")
    offX, offW = V(4), V(4)
    adrX, adrW = V(4), V(16)
    k(f"""s_lshl2_add_u32 s{sT}, s{sRT}, s{sW}
    s_mul_i32 s{sT}, s{sT}, {32*1280}
    v_lshrrev_b32 v{t0}, 3, v{vL}
    v_mul_u32_u24 v{t0}, 1280, v{t0}
    v_add_u32 v{t0}, s{sT}, v{t0}
    v_lshrrev_b32 v{t1}, 4, v{vL}
    v_and_b32 v{t3}, 7, v{vL}
    v_xor_b32 v{t3}, v{t3}, v{t1}
    v_lshl_add_u32 v{offX}, v{t3}, 4, v{t0}
    v_xor_b32 v{t3}, 4, v{t3}
    v_lshl_add_u32 v{offX+1}, v{t3}, 4, v{t0}
    v_add_u32 v{offX+1}, 9216, v{offX+1}
    v_add_u32 v{offX+2}, {2*9216}, v{offX}
    v_add_u32 v{offX+3}, {2*9216}, v{offX+1}""")
    k(f"""s_mul_i32 s{sT}, s{sW}, {16*3840}
    s_lshl_b32 s{sT2}, s{sCT}, 8
    s_add_u32 s{sT}, s{sT}, s{sT2}
    v_mul_u32_u24 v{t0}, 3840, v{t1}
    v_add_u32 v{t0}, s{sT}, v{t0}
    v_lshlrev_b32 v{t3}, 2, v{t1}
    v_xor_b32 v{t3}, v{t3}, v{vL}
    v_and_b32 v{t3}, 15, v{t3}
    v_lshl_add_u32 v{offW}, v{t3}, 4, v{t0}""")
    for i in range(1, 4): k(f"v_add_u32 v{offW+i}, {i*(4*3840-1024)}, v{offW}")
    k(f"s_lshl_b32 s{sM0X}, s{sW}, 12\ns_add_u32 s{sM0W}, s{sM0X}, 0x10000")
    rot = opt.get("a_rot", [3, 1])
    if rot:
        k(f"s_mul_i32 s{sT}, s{sRT}, {rot[0]}\ns_mul_i32 s{sT2}, s{sCT}, {rot[1]}\ns_add_u32 s{sT}, s{sT}, s{sT2}")
        k(f"s_mul_i32 s{sT2}, s{sT}, 6554\ns_lshr_b32 s{sT2}, s{sT2}, 16\ns_mul_i32 s{sT2}, s{sT2}, 10\ns_sub_u32 s{sT}, s{sT}, s{sT2}")
        k(f"s_lshl_b32 s{sKX}, s{sT}, 7\ns_mul_i32 s{sKW}, s{sT}, {64*3840}")
    else:
        k(f"s_mov_b32 s{sKX}, 0\ns_mov_b32 s{sKW}, 0")
    srd(k, 4, 36, 0, S*D*2); srd(k, 8, 38, 0, D*3*D*2)
    def dma_items(stage):
        sl = (stage % 4) * 16384
        it = [f"s_add_u32 m0, s{sM0X}, {sl}"]
        it += [(f"buffer_load_dwordx4 v{offX+i}, s[4:7], s{sKX} offen offset:{1024*i}{nt} lds", f"st{stage}") for i in range(4)]
        it += [f"s_add_u32 m0, s{sM0W}, {sl}"]
        it += [(f"buffer_load_dwordx4 v{offW+i}, s[8:11], s{sKW} offen offset:{1024*i}{nt} lds", f"st{stage}") for i in range(4)]
        adv = f"s_add_u32 s{sKX}, s{sKX}, 128\ns_add_u32 s{sKW}, s{sKW}, {64*3840}"
        if rot: adv += f"\ns_cmp_eq_u32 s{sKX}, 1280\ns_cselect_b32 s{sKX}, 0, s{sKX}\ns_cselect_b32 s{sKW}, 0, s{sKW}"
        it += [adv]
        return it
    k.run(dma_items(0))
    st(1)
    wt = opt.get("a_wt"); tX, tW, tA = V(), V(), V()
    if wt:
        k(f"""s_and_b32 s{sT}, s{sCT}, 7
        s_lshl3_add_u32 s{sT}, s{sRT}, s{sT}
        s_lshl2_add_u32 s{sT}, s{sT}, s{sW}
        s_mul_i32 s{sT}, s{sT}, {4*1280}
        v_and_b32 v{t0}, 3, v{vL}
        v_mul_u32_u24 v{t0}, 1280, v{t0}
        v_add_u32 v{tX}, s{sT}, v{t0}
        s_and_b32 s{sT}, s{sRT}, 3
        s_lshl2_add_u32 s{sT}, s{sT}, s{sW}
        s_mul_i32 s{sT}, s{sT}, {4*3840}
        s_lshl_b32 s{sT2}, s{sCT}, 8
        s_add_u32 s{sT}, s{sT}, s{sT2}
        v_bfe_u32 v{t0}, v{vL}, 1, 2
        v_mul_u32_u24 v{t0}, 3840, v{t0}
        v_and_b32 v{t2}, 1, v{vL}
        v_lshl_add_u32 v{t0}, v{t2}, 7, v{t0}
        v_add_u32 v{tW}, s{sT}, v{t0}""")
    def warm(pos):
        out = []
        for (ps, kind, lo, hi) in (wt or []):
            if ps != pos: continue
            if kind == "x": out.append(f"v_lshrrev_b32 v{tA}, 2, v{vL}\nv_min_u32 v{tA}, {hi-lo-1}, v{tA}\nv_lshl_add_u32 v{tA}, v{tA}, 7, v{tX}\nbuffer_load_dword v{vTD}, v{tA}, s[4:7], 0 offen offset:{128*lo}")
            else: out.append(f"v_lshrrev_b32 v{tA}, 3, v{vL}\nv_min_u32 v{tA}, {hi-lo-1}, v{tA}\nv_add_u32 v{tA}, {lo}, v{tA}\nv_mul_u32_u24 v{tA}, {64*3840}, v{tA}\nv_add_u32 v{tA}, v{tA}, v{tW}\nbuffer_load_dword v{vTD}, v{tA}, s[8:11], 0 offen")
        return out
    k.run(warm(0))
    k(f"""v_and_b32 v{t0}, 31, v{vL}
    v_lshrrev_b32 v{t2}, 1, v{t0}
    v_and_b32 v{t2}, 7, v{t2}
    v_lshrrev_b32 v{t3}, 5, v{vL}
    v_xor_b32 v{t2}, v{t2}, v{t3}
    s_lshl_b32 s{sT}, s{sW}, 1
    v_xor_b32 v{t2}, s{sT}, v{t2}
    v_lshlrev_b32 v{t0}, 7, v{t0}
    v_add_u32 v{t0}, s{sM0X}, v{t0}""")
    for j in range(4):
        k(f"v_xor_b32 v{adrX+j}, {2*j}, v{t2}\nv_lshl_add_u32 v{adrX+j}, v{adrX+j}, 4, v{t0}")
    late1 = opt.get('a_late1', 1)
    if not late1: k.run(dma_items(1))
    k(f"""v_bfe_u32 v{t0}, v{vL}, 2, 2
    v_lshl_add_u32 v{t2}, v{t3}, 3, v{t0}
    v_lshlrev_b32 v{t2}, 8, v{t2}
    v_lshl_add_u32 v{t2}, v{t0}, 6, v{t2}
    v_and_b32 v{t0}, 1, v{t1}
    v_lshl_add_u32 v{t2}, v{t0}, 5, v{t2}
    v_and_b32 v{t0}, 3, v{vL}
    v_lshl_add_u32 v{t2}, v{t0}, 3, v{t2}
    v_add_u32 v{t2}, s{sM0W}, v{t2}""")
    for j in range(4):
        for i in range(4): k(f"v_xor_b32 v{adrW+4*j+i}, {j*4096 + i*64}, v{t2}")
    pro = opt.get('a_pro', 2)
    if pro > 2: k.run(dma_items(2))
    nb = opt.get('a_nb', 3); ah = nb - 1
    acc = V(64, 2); G = opt.get('a_grp', 1); sm = opt.get('a_sm', 0); nf = G + ah; fx = [V(4, 2) for _ in range(nf)]; fw = [V(16, 2) for _ in range(nb)]
    ones = V(4, 2); sx = V(4, 2); sq = V(2, 2); cs = V(16, 2); un = V(8 if sm in (1, 2) else 1, 2); msk = V()
    cp = V(16, 2); cw = V(8, 2); mu = V(2, 2); rr = V(2, 2); rt = cp; pk = fw[0]; adrE = V(); adrR = V(); offK = o16; offT = V(); offV = V(4); assert V.p <= vTD, V.p
    k(f"v_mov_b32 v{ones}, 0x3f803f80")
    for r in [sx, sq, sq + 1] + list(range(cs, cs+4)): k(f"v_mov_b32 v{r}, 0")
    if sm:
        k(f"v_bfe_u32 v{un}, v{vL}, 2, 2\nv_cmp_eq_u32 vcc, v{un}, v{t1}\nv_cndmask_b32 v{ones}, 0, v{ones}, vcc\nv_mov_b32 v{msk}, 0xffff0000")
        for r in range(1, 4): k(f"v_mov_b32 v{ones+r}, v{ones}")
    srd(k, 12, sWS, QKV, QKV_SZ); srd(k, 24, 24, 0, 256); srd(k, WR, WR, 0, S*F*2); srd(k, 20, 20, 0, S*F*2)
    c.maps(sT, sT2)
    c.touch_setup(vPF, sT)
    if pro > 3: k.run(dma_items(3))
    k(f"""v_add_u32 v{adrE}, 0x20000, v{offK}
    v_and_b32 v{t0}, 31, v{vL}
    v_lshl_add_u32 v{offV}, v{t3}, 30, v{offK}
    v_mul_u32_u24 v{offT}, {HS}, v{t3}
    v_lshl_add_u32 v{offT}, v{t0}, 3, v{offT}
    s_lshl2_add_u32 s{sBM}, s{sRT}, s{sW}
    s_lshl4_add_u32 s{sFl}, s{sRT}, s{sCT}
    s_lshl_b32 s{sFl}, s{sFl}, 7
    s_cmp_eq_u32 s{sW}, 0
    s_cselect_b32 s{sFl}, s{sFl}, {OOB}
    """)
    c.b_early(t2)
    c.x('a0')
    if late1:
        if late1 == 1: k("s_barrier")
        k.run(dma_items(1))
    k.run(warm(1))
    c.x('a1')
    k(f"s_cmp_ge_u32 s{sCT}, 10\ns_cbranch_scc1 A_v")
    snap1 = k.snapshot()

    def reads(n):
        s_, j = divmod(n, 4); sl = (s_ % 4) * 16384; b = n % nb
        it = [f"ds_read_b128 {v(fx[n % nf],4)}, v{adrX+j} offset:{sl}"]
        for i in range(4):
            for u in range(2):
                it.append(f"ds_read_b64_tr_b16 {v(fw[b]+4*i+2*u,2)}, v{adrW+4*j+i} offset:{sl + u*1024}")
        return it
    def stats(n):
        b = n % nb; it = []
        if opt.get("a_nostats"): return it
        if sm in (1, 2):
            for r in range(4):
                it += [f"v_lshlrev_b32 v{un+2*r}, 16, v{fx[n % nf]+r}", f"v_and_b32 v{un+2*r+1}, v{msk}, v{fx[n % nf]+r}"]
            for r in range(4):
                if sm == 1: it += [f"v_pk_fma_f32 {v(sq,2)}, {v(un+2*r,2)}, {v(un+2*r,2)}, {v(sq,2)}"]
                else: it += [f"v_fmac_f32 v{sq}, v{un+2*r}, v{un+2*r}", f"v_fmac_f32 v{sq+1}, v{un+2*r+1}, v{un+2*r+1}"]
            if sm == 1: it = it[:4] + [it[8]] + it[4:6] + [it[9]] + it[6:8] + it[10:]
            return it
        ms = range(max(n - G + 1, 0), n + 1) if n % G == 0 else range(n - n % G + 1, 40) if n == 39 else []
        for m in ms:
            for r in range(4):
                if not sm: it.append(f"v_dot2_f32_bf16 v{sx}, v{fx[m % nf]+r}, v{ones}, v{sx}")
                z = sq + (r % 2 if sm else 0)
                it.append(f"v_dot2_f32_bf16 v{z}, v{fx[m % nf]+r}, v{fx[m % nf]+r}, v{z}")
        if n % 4 == 0 and not sm:
            for r in range(4):
                for i in range(4): it.append(f"v_dot2_f32_bf16 v{cs+i}, v{fw[b]+4*i+r}, v{ones}, v{cs+i}")
        return it
    def main(vmode):
        def mm(i, xw, ww, c, op="v_mfma_f32_32x32x16_bf16"):
            a_, b_ = (xw, ww) if vmode else (ww, xw)
            return f"{op} {v(acc+16*i,16)}, {a_}, {b_}, {c}"
        c.x("a2"); k.wait_tag("st0"); c.x("a3"); k("s_barrier"); st(2)
        for n in range(ah): k.run(reads(n))
        pend = []
        for s_ in range(pro, 4): pend += dma_items(s_) + warm(s_)
        for n in range(40):
            s_, j = divmod(n, 4); b = n % nb
            if j == 4 - ah and s_ < 9:
                assert not any(isinstance(x, tuple) and x[1] == f"st{s_+1}" for x in pend)
                k.wait_all(vm=False); k.wait_tag(f"st{s_+1}"); k("s_barrier")
                if s_ + 4 < 10: pend += dma_items(s_ + 4)
            c.x(f'an{n}')
            if n == 38:
                k.wait_all(vm=False); k("s_barrier")
            mf = [mm(i, v(fx[n % nf],4), v(fw[b]+4*i,4), v(acc+16*i,16) if n else "0") for i in range(4)]
            if sm and not opt.get("a_nostats"):
                M16 = lambda d, x, first: f"v_mfma_f32_16x16x32_bf16 {v(d,4)}, {v(ones,4)}, {v(x,4)}, {'0' if first else v(d,4)}"
                if n % 4 == 0: mf = [x for i in range(4) for x in (mf[i], M16(cs+4*i, fw[b]+4*i, n == 0))]
                mf = [M16(sx, fx[n % nf], n == 0)] + mf if sm != 4 or n == 39 else mf + [M16(sx, fx[n % nf], n == 0)]
            fill = reads(n + ah) if n + ah < 40 else []
            take = opt.get('a_take', 4) if len(pend) > 11 or j != 3 - ah else 99
            fill = interleave(fill, pend[:take]) if fill else pend[:take]
            pend = pend[take:]
            sts = stats(n)
            if n in ta: fill = fill + [c.touch(ta.index(n), vPF, vTD, 100)]
            if n == 36: fill = fill + [f"buffer_load_dword v{vD}, off, s[24:27], 0 sc1"]
            if n == 37:
                if sm: fill += [f"v_mov_b32 v{cs+i}, v{cs+4*i}" for i in range(1, 4)]
                fill += [f"s_lshl_b32 s{sT}, s{sW}, 10", f"v_add_u32 v{t0}, s{sT}, v{adrE}", f"ds_write_b128 v{t0}, {v(cs,4)}"]
            if n == 38:
                fill += [f"ds_read_b128 {v(cp+4*w,4)}, v{adrE} offset:{1024*w}" for w in range(4)]
            if n == 39:
                for i in range(4):
                    fill += [f"v_add_f32 v{cp+i}, v{cp+i}, v{cp+4+i}", f"v_add_f32 v{cp+8+i}, v{cp+8+i}, v{cp+12+i}"]
                for i in range(4): fill += [f"v_add_f32 v{cp+i}, v{cp+i}, v{cp+8+i}"]
                for i in range(4): fill += [f"v_cvt_pk_bf16_f32 v{cp+4+i}, v{cp+i}, v{cp+i}"]
                for i in range(4): fill += [f"v_and_b32 v{cp+4+i}, 0xffff0000, v{cp+4+i}"]
                for i in range(4): fill += [f"v_sub_f32 v{cp+i}, v{cp+i}, v{cp+4+i}"]
                for i in range(4): fill += [f"v_cvt_pk_bf16_f32 v{cw+2*i}, v{cp+4+i}, v{cp+i}", f"v_cvt_pk_bf16_f32 v{cw+2*i+1}, v{cp+4+i}, v{cp+i}"]
                if sm: k.run(mf[:2] + sts + [f"v_add_f32 v{sq}, v{sq}, v{sq+1}"]); mf = mf[2:]
                else: k.run(sts)
                fin = []
                fin += [f"v_mov_b32 v{sx+1}, v{sx}", f"v_mov_b32 v{sq+1}, v{sq}",
                        f"v_permlane32_swap_b32 v{sx}, v{sx+1}", f"v_permlane32_swap_b32 v{sq}, v{sq+1}",
                        f"v_add_f32 v{sx}, v{sx}, v{sx+1}", f"v_add_f32 v{sq}, v{sq}, v{sq+1}",
                        f"v_mul_f32 v{sx}, {f32(-1/640)}, v{sx}", f"v_mul_f32 v{sq}, {f32(1/640)}, v{sq}",
                        f"v_cvt_pk_bf16_f32 v{mu}, v{sx}, v{sx}",
                        f"v_fma_f32 v{sq}, -v{sx}, v{sx}, v{sq}",
                        f"v_and_b32 v{sx+1}, 0xffff0000, v{mu}",
                        f"v_max_f32 v{sq}, 0, v{sq}",
                        f"v_sub_f32 v{sx}, v{sx}, v{sx+1}",
                        f"v_add_f32 v{sq}, {f32(1e-5)}, v{sq}",
                        f"v_cvt_pk_bf16_f32 v{mu+1}, v{sx}, v{sx}",
                        f"v_rsq_f32 v{rr}, v{sq}"]
                k.run(interleave(mf, fill[:12] + fin + fill[12:], per=7))
            elif opt.get("a_mix", 0) or sm in (1, 2):
                k.run(interleave(mf, interleave(fill, sts) if len(fill) >= len(sts) else interleave(sts, fill)))
            else:
                k.run(interleave(mf, fill) + sts)
        st(3)
        ex = [mm(i, v(mu,2), v(cw+2*i,2), v(acc+16*i,16), "v_mfma_f32_32x32x8_bf16") for i in range(4)]
        return ex

    ex = main(False)
    k(f"""s_cmp_ge_u32 s{sCT}, 5
    s_cselect_b32 s{sSC}, 1.0, {f32(math.log2(math.e) / math.sqrt(20))}
    s_cselect_b32 s{sT}, 5, 0
    s_cselect_b32 s{sT2}, 64, 0""")
    k(f"""s_sub_u32 s{sCT}, s{sCT}, s{sT}
    s_add_u32 s{sBM}, s{sBM}, s{sT2}
    s_lshl_b32 s{sBT}, s{sBM}, 8
    s_add_u32 s{sBT}, s{sBT}, {R_QT}
    s_lshl_b32 s{sBM}, s{sBM}, 10""")
    k.run(ex[:1]); k(f"v_mul_f32 v{rr}, s{sSC}, v{rr}"); k.run(ex[1:2])
    for cc in range(1, 5): k(f"s_cmp_eq_u32 s{sCT}, {cc}\ns_cbranch_scc1 A_qk{cc}")
    snap2 = k.snapshot()
    for cc in range(5):
        k.restore(snap2)
        if cc: k.label(f"A_qk{cc}")
        items = [(e, -1) for e in ex[2:]]
        def cv(i, pk=pk):
            for p in (2*i, 2*i+1):
                items.append((f"v_pk_mul_f32 {v(acc+2*p,2)}, {v(acc+2*p,2)}, {v(rr,2)} op_sel_hi:[1,0]", p))
                items.append((f"v_cvt_pk_bf16_f32 v{pk+p}, v{acc+2*p}, v{acc+2*p+1}", p))
        i = 0
        while i < 16:
            I = 16 * cc + i; m = I % 5; he = 2 * (I // 5)
            split = m != 2 and not (m in (0, 3) and i < 15)
            cv(i, cp - 2*i if split else pk)
            if m == 2:
                items.append((f"s_add_u32 s{sT}, s{sBT}, {he*HS}\nbuffer_store_dwordx2 {v(pk+2*i,2)}, v{offT}, s[12:15], s{sT} offen sc1", -1)); i += 1; continue
            ad = f"s_add_u32 s{sT}, s{sBM}, {(he + (m > 2))*HS}\n"
            if m in (0, 3) and i < 15:
                cv(i + 1)
                items.append((ad + f"buffer_store_dwordx4 {v(pk+2*i,4)}, v{offK}, s[12:15], s{sT} offen sc1", -1)); i += 2
            else:
                items += [(f"v_permlane32_swap_b32 v{cp}, v{cp+2}", -1), (f"v_permlane32_swap_b32 v{cp+1}, v{cp+3}", -1)]
                items.append((ad + f"buffer_store_dwordx4 {v(cp,4)}, v{offV}, s[12:15], s{sT} offen offset:{0 if m in (0,3) else 512} sc1", -1)); i += 1
        k.run(schedule(items))
        k("s_branch A_done")
    k.restore(snap1)
    k.label("A_v")
    k(f"""s_sub_u32 s{sT}, s{sCT}, 10
    s_lshl_b32 s{sT}, s{sT}, 7
    v_mul_u32_u24 v{t2}, 320, v{t3}
    s_lshl_b32 s{sT2}, s{sW}, 7
    s_add_u32 s{sT2}, s{sT2}, {0x20000+4096}
    v_lshl_add_u32 v{adrR}, v{t0}, 2, s{sT2}
    v_lshl_add_u32 v{offT}, v{t3}, 4, s{sT2}
    v_add_u32 v{t0}, s{sT}, v{t0}
    s_mul_i32 s{sBM}, s{sBM}, 1280
    s_add_u32 s{sBM}, s{sBM}, {R_V}""")
    for i in range(4):
        k(f"""v_add_u32 v{t1}, {32*i}, v{t0}
        v_mul_u32_u24 v{t3}, 3277, v{t1}
        v_lshrrev_b32 v{t3}, 16, v{t3}
        v_mul_u32_u24 v{offV+i}, {HS - 320}, v{t3}
        v_lshl_add_u32 v{offV+i}, v{t1}, 4, v{offV+i}
        v_add_u32 v{offV+i}, v{offV+i}, v{t2}""")
    ex = main(True)
    k(f"ds_write_b32 v{adrR}, v{rr}")
    k.run(ex[:1])
    k.wait_all(vm=False)
    for q in range(4): k(f"ds_read_b128 {v(rt+4*q,4)}, v{offT} offset:{32*q}")
    k.run(ex[1:])
    for i in range(4):
        for p in range(8):
            k(f"v_pk_mul_f32 {v(acc+16*i+2*p,2)}, {v(acc+16*i+2*p,2)}, {v(rt+2*p,2)}")
        for p in range(8):
            k(f"v_cvt_pk_bf16_f32 v{pk+8*i+p}, v{acc+16*i+2*p}, v{acc+16*i+2*p+1}")
            if p % 4 == 3:
                k(f"buffer_store_dwordx4 {v(pk+8*i+p-3,4)}, v{offV+i}, s[12:15], s{sBM} offen offset:{640*(p//4)} sc1")
    k("s_branch A_done")
    k.restore(snap0)
    k.label("A_prep")
    sP = sRT
    k(f"s_sub_u32 s{sT2}, s{sJ}, 30\ns_lshl1_add_u32 s{sP}, s{sXC}, s{sT2}")
    srd(k, 4, 40, 0, D*D*2); srd(k, 8, sWS, WOF, WOF_SZ); srd(k, 12, sWS, ST, ST_SZ); srd(k, 16, sWS, SY, SY_SZ)
    V = Alloc(vT + 1); aM, aT, oT = V(), V(), V(3); mk = V(4, 2); dat = V(56, 2); assert V.p <= vTD, V.p
    k(f"""s_mul_i32 s{sKX}, s{sW}, {13*1024}
    s_mul_i32 s{sKW}, s{sP}, 51200
    s_add_u32 s{sKW}, s{sKW}, s{sKX}""")
    for i in range(13):
        if i % 4 == 0: k(f"s_add_u32 m0, s{sKX}, {i*1024}\ns_add_u32 s{sT}, s{sKW}, {i*1024}")
        k(f"buffer_load_dwordx4 v{o16}, s[4:7], s{sT} offen offset:{1024*(i%4)} lds", "wo")
    k(f"""v_mov_b32 v{mk}, 0
    v_mov_b32 v{mk+1}, -1.0
    v_mov_b32 v{mk+2}, 0
    v_mov_b32 v{mk+3}, -1.0
    s_lshl2_add_u32 s{sT}, s{sP}, s{sW}
    s_lshl_b32 s{sT}, s{sT}, 11
    buffer_store_dwordx4 {v(mk,4)}, v{o16}, s[12:15], s{sT} offen sc1
    buffer_store_dwordx4 {v(mk,4)}, v{o16}, s[12:15], s{sT} offen offset:1024 sc1
    s_lshl_b32 s{sT}, s{sT}, 1
    v_lshlrev_b32 v{t0}, 6, v{vL}
    buffer_store_dword v{mk}, v{t0}, s[16:19], s{sT} offen sc1""")
    srd(k, 24, 24, 0, 256); srd(k, WR, WR, 0, S*F*2); srd(k, 20, 20, 0, S*F*2)
    c.maps(sT, sT2)
    c.touch_setup(vPF, sT)
    if opt.get("pf_rest"):
        lo, hi = opt["pf_rest"]
        n = (hi - lo + 65535) // 65536
        k(f"s_and_b32 s{sT}, s{sJ}, 1\ns_lshl_b32 s{sT}, s{sT}, 15\nv_lshlrev_b32 v{t1}, 7, v0\nv_add_u32 v{t1}, s{sT}, v{t1}")
        for i in range(n):
            k(f"v_add_u32 v{t0}, {lo + 65536*i}, v{t1}\nv_min_u32 v{t0}, {hi - 128}, v{t0}\nglobal_load_dword v{dat+52+i}, v{t0}, s[44:45]")
    k(f"""v_lshrrev_b32 v{t1}, 4, v{vL}
    v_bfe_u32 v{t0}, v{vL}, 2, 2
    v_and_b32 v{t3}, 3, v{vL}
    v_mul_u32_u24 v{aT}, 1280, v{t0}
    v_lshl_add_u32 v{aT}, v{t3}, 3, v{aT}
    v_lshrrev_b32 v{t0}, 1, v{t1}
    v_mul_u32_u24 v{t0}, {20*1280}, v{t0}
    v_and_b32 v{t3}, 1, v{t1}
    v_mul_u32_u24 v{t3}, {4*1280}, v{t3}
    v_add3_u32 v{aM}, v{aT}, v{t0}, v{t3}
    s_mul_i32 s{sT}, s{sW}, 320
    v_add_u32 v{aM}, s{sT}, v{aM}
    s_lshl_b32 s{sT}, s{sW}, 2
    v_add_u32 v{t1}, s{sT}, v{t1}
    v_lshl_add_u32 v{aT}, v{t1}, 5, v{aT}
    v_and_b32 v{t0}, 15, v{vL}
    v_lshlrev_b32 v{t0}, 4, v{t0}""")
    for m in range(3):
        k(f"""v_add_u32 v{t3}, {16*m}, v{t1}
        v_mul_u32_u24 v{oT+m}, 13108, v{t3}
        v_lshrrev_b32 v{oT+m}, 16, v{oT+m}
        v_mul_u32_u24 v{oT+m}, 95, v{oT+m}
        v_add_u32 v{oT+m}, v{oT+m}, v{t3}
        v_lshl_add_u32 v{oT+m}, v{oT+m}, 10, v{t0}""")
    k(f"""s_mul_i32 s{sKX}, s{sW}, 200
    s_mul_i32 s{sT}, s{sP}, 5
    s_add_u32 s{sKX}, s{sKX}, s{sT}
    s_lshl_b32 s{sKX}, s{sKX}, 10
    s_lshr_b32 s{sKW}, s{sP}, 2
    s_add_u32 s{sKW}, s{sKW}, 16
    s_mul_i32 s{sKW}, s{sKW}, 5120
    s_and_b32 s{sT}, s{sP}, 3
    s_lshl_b32 s{sT}, s{sT}, 8
    s_add_u32 s{sKW}, s{sKW}, s{sT}""")
    k.wait_tag("wo"); k("s_barrier")
    for i in range(10):
        for u in range(2): k(f"ds_read_b64_tr_b16 {v(dat+4*i+2*u,2)}, v{aM} offset:{u*8*1280 + i*32}")
        if i % 5 == 4:
            for ii in range(i - 4, i + 1):
                k(f"s_add_u32 s{sT}, s{sKX}, {((ii//5)*100 + ii%5)*1024}\nbuffer_store_dwordx4 {v(dat+4*ii,4)}, v{o16}, s[8:11], s{sT} offen sc1")
    for m in range(3):
        for u in range(2): k(f"ds_read_b64_tr_b16 {v(dat+40+4*m+2*u,2)}, v{aT} offset:{(16+20*u)*1280 + m*512}")
    for m in range(3):
        k(f"buffer_store_dwordx4 {v(dat+40+4*m,4)}, v{oT+m}, s[8:11], s{sKW} offen sc1")
    k.wait_all(); k("s_barrier")
    k(f"""s_cmp_eq_u32 s{sW}, 0
    s_cselect_b32 s{sT}, 0, {OOB}
    s_mov_b32 s{sFl}, {OOB}
    v_mov_b32 v{vD}, 0
    s_mov_b64 exec, 1
    buffer_atomic_add v{vP}, off, s[24:27], s{sT} sc1
    s_mov_b64 exec, -1""")
    st(3); c.b_early(t2)
    for i in range(len(ta)): k(c.touch(i, vPF, vTD, 100))
    k.label("A_done")
    k.hist = []; k.vm = [({("v", r) for r in [vD] + list(range(vTD, 251))}, "A")]; k.lg = []
    k("s_nop 1"); c.x("ae1")
```

```python
from util import *

A = Alloc(0); sM = 48
KM = [A(4) for _ in range(10)]; KT = [A(4) for _ in range(5)]; VV = [[A(4), A(4)] for _ in range(10)]
QM = [A(4), A(4)]; QL = [A(4), A(4)]; QU = [A(4), A(4)]; half = A(2, 2)

def b_early(c, sMn):
    k = c.k
    k(f"v_mov_b32 v{sMn}, 0x3f803f80")
    for j in range(10):
        for t in range(2):
            for r in range(4): k(f"v_accvgpr_write_b32 a{VV[j][t]+r}, v{sMn}")
    k(f"v_accvgpr_write_b32 a{KT[4]+2}, 0")
    for p in range(5): k(f"v_accvgpr_write_b32 a{KT[p]+3}, 0")
    k(f"v_mov_b32 v{sMn}, 0x3f80")
    for q in range(2):
        for X in (QL, QU): k(f"v_accvgpr_write_b32 a{X[q]+2}, v{sMn}\nv_accvgpr_write_b32 a{X[q]+3}, 0")
    k(f"v_mov_b32 v{sMn}, 0xbf00bf00\nv_accvgpr_write_b32 a{half}, v{sMn}\nv_accvgpr_write_b32 a{half+1}, v{sMn}")
    for r in range(16):
        key = 8 * (r // 4) + r % 4
        k(f"s_mov_b32 s{sM+2*r}, {hex((0xffffffff << key) & 0xffffffff)}\ns_mov_b32 s{sM+2*r+1}, {hex((0xffffffff << (key+4)) & 0xffffffff)}")
Ctx.b_early = b_early

def phase_B(c):
    k, opt, st = c.k, c.opt, c.st
    sH, sT, sX, sO0, sO1, sT0, sT1, sK, sV, sKT, sQ, sQT, sWo, sXo, sE = 28, 29, 30, 31, 32, 33, 34, 35, 38, 39, 40, 41, 42, 43, 44
    V = Alloc(V0)
    aK, aT, aV, sMn, sTl = [V() for _ in range(5)]
    t0, t1, t2, oQL, oQU, vF, oX = 230, 231, 232, 233, 234, 235, 236
    srd(k, SYR, sWS, SY, SY_SZ); srd(k, 4, 36, 0, S*D*2); srd(k, 8, sWS, OF, OF_SZ); srd(k, 12, sWS, QKV, QKV_SZ); srd(k, 16, sWS, WOF, WOF_SZ)
    if opt.get("b_map", 1): k(f"s_and_b32 s{sH}, s{sJ}, 3\ns_lshl2_add_u32 s{sH}, s{sXC}, s{sH}\ns_lshr_b32 s{sX}, s{sJ}, 2")
    else: k(f"s_mov_b32 s{sH}, s{sJ}\ns_mov_b32 s{sX}, s{sXC}")
    k(f"""s_lshr_b32 s{sQ}, s{sW}, 1
    s_lshl1_add_u32 s{sQ}, s{sX}, s{sQ}
    s_lshl1_add_u32 s{sK}, s{sX}, s{sW}
    s_sub_u32 s{sK}, s{sK}, 2
    s_cselect_b32 s{sT}, s{sQ}, s{sK}
    s_cselect_b32 s{sE}, {OOB}, 0
    s_cselect_b32 s{sK}, 0, s{sK}
    v_and_b32 v{t0}, 1, v{vL}
    v_mul_u32_u24 v{t0}, 19, v{t0}
    s_mul_i32 s{sT0}, s{sH}, 20
    v_add_u32 v{t0}, s{sT0}, v{t0}
    v_and_b32 v{t0}, 0x380, v{t0}
    v_lshrrev_b32 v{t1}, 1, v{vL}
    v_mul_u32_u24 v{t1}, 640, v{t1}
    s_lshl_b32 s{sT}, s{sT}, 11
    s_lshl_b32 s{sQ}, s{sQ}, 11
    v_mov_b32 v{t2}, s{sT}
    v_writelane_b32 v{t2}, s{sQ}, 0
    v_writelane_b32 v{t2}, s{sQ}, 1
    v_add3_u32 v{vF}, v{t0}, v{t1}, v{t2}
    s_mul_i32 s{sO0}, s{sH}, {HS}
    s_add_u32 s{sE}, s{sE}, s{sO0}
    s_mul_i32 s{sV}, s{sK}, 5120
    s_add_u32 s{sV}, s{sV}, s{sE}
    s_add_u32 s{sV}, s{sV}, {R_V}
    s_lshl_b32 s{sKT}, s{sK}, 10
    s_lshl2_add_u32 s{sK}, s{sKT}, s{sE}
    s_add_u32 s{sK}, s{sK}, {R_KM}
    s_add_u32 s{sKT}, s{sKT}, s{sE}
    s_add_u32 s{sKT}, s{sKT}, {R_KT}
    s_lshl2_add_u32 s{sT}, s{sX}, s{sW}
    s_lshl_b32 s{sQT}, s{sT}, 9
    s_lshl2_add_u32 s{sQ}, s{sQT}, s{sO0}
    s_add_u32 s{sQT}, s{sQT}, s{sO0}
    s_add_u32 s{sQT}, s{sQT}, {R_QT}
    v_lshrrev_b32 v{t0}, 5, v{vL}
    v_and_b32 v{t1}, 31, v{vL}
    v_lshlrev_b32 v{oQL}, 30, v{t0}
    v_lshl_add_u32 v{oQL}, v{t1}, 3, v{oQL}
    v_xor_b32 v{oQU}, 0x40000000, v{oQL}
    s_lshl_b32 s{sT0}, s{sW}, 11
    v_add_u32 v{aK}, s{sT0}, v{o16}
    s_lshl_b32 s{sT0}, s{sW}, 9
    s_add_u32 s{sT0}, s{sT0}, 36864
    v_lshl_add_u32 v{aT}, v{vL}, 3, s{sT0}
    s_mul_i32 s{sT0}, s{sW}, 2560
    s_add_u32 s{sT0}, s{sT0}, 16384
    v_mul_u32_u24 v{aV}, 320, v{t0}
    v_lshl_add_u32 v{aV}, v{t1}, 4, v{aV}
    v_add_u32 v{aV}, s{sT0}, v{aV}""")
    for m in range(3):
        k(f"""v_add_u32 v{t2}, {64*m}, v{vL}
        v_mul_u32_u24 v{t2}, 5462, v{t2}
        v_lshrrev_b32 v{t2}, 16, v{t2}
        v_mul_u32_u24 v{t2}, {1280-192}, v{t2}
        v_add_u32 v{oX+m}, v{o16}, v{t2}""")
    k(f"""s_mul_i32 s{sXo}, s{sCB}, 160
    s_andn2_b32 s{sXo}, s{sXo}, 32
    s_lshl2_add_u32 s{sT0}, s{sTB}, s{sW}
    s_mul_i32 s{sT0}, s{sT0}, 20480
    s_add_u32 s{sXo}, s{sXo}, s{sT0}
    s_mul_i32 s{sWo}, s{sCB}, 102400
    s_add_u32 s{sWo}, s{sWo}, s{sSL}""")
    def late():
        for p in range(4):
            k(f"s_cmp_ge_u32 s{sT}, {4-p}\ns_cselect_b32 s{sT0}, 0, 0xf149\nv_accvgpr_write_b32 a{KT[p]+2}, s{sT0}")
    MK = V(8); hi = V(); lo = t2
    ot = opt.get('o_tail', 1)
    def late2():
        k(f"v_mov_b32 v{lo}, 0xffff\nv_mov_b32 v{hi}, 0xffff0000")
        for p in range(8):
            k(f"v_cndmask_b32 v{MK+p}, 0, v{lo}, s[{sM+4*p}:{sM+4*p+1}]\nv_cndmask_b32 v{sMn}, 0, v{hi}, s[{sM+4*p+2}:{sM+4*p+3}]\nv_or_b32 v{MK+p}, v{MK+p}, v{sMn}")
        k(f"""v_bfe_u32 v{sMn}, v{vL}, 4, 1
        v_mul_u32_u24 v{sMn}, 20480, v{sMn}
        v_and_b32 v{t1}, 15, v{vL}
        v_lshl_add_u32 v{sTl}, v{t1}, {4 - ot}, v{sMn}
        v_lshl_add_u32 v{sMn}, v{t1}, 4, v{sMn}
        v_lshl_add_u32 v{sTl}, v{t0}, 30, v{sTl}
        v_lshl_add_u32 v{sMn}, v{t0}, 8, v{sMn}
        s_mul_i32 s{sO0}, s{sT}, 81920
        s_lshr_b32 s{sT0}, s{sH}, 1
        s_lshl_b32 s{sT0}, s{sT0}, 8
        s_and_b32 s{sT1}, s{sH}, 1
        s_lshl_b32 s{sT1}, s{sT1}, {7 if ot else 3}
        s_add_u32 s{sT0}, s{sT1}, s{sT0}
        s_add_u32 s{sT0}, s{sT0}, s{sO0}
        s_add_u32 s{sT0}, s{sT0}, 16384
        s_add_u32 s{sT1}, s{sT0}, 40960
        s_lshl_b32 s{sO1}, s{sH}, 9
        s_add_u32 s{sO0}, s{sO0}, s{sO1}
        s_add_u32 s{sO1}, s{sO0}, 40960
        s_lshl_b32 s{sFl}, s{sT}, 5
        s_add_u32 s{sFl}, s{sFl}, s{sH}
        s_add_u32 s{sFl}, s{sFl}, {F2}
        s_lshl_b32 s{sFl}, s{sFl}, 7
        s_mov_b32 s{sE}, 0xfffff
        s_mov_b32 s{sE+1}, 0xfffff""")
        c.w1_setup(t0, t1, t2, sX)
    late()
    st(4)
    k(f"v_cmp_gt_u32 vcc, 16, v{vP+1}\ns_cbranch_vccz B_ready\ns_mov_b32 s46, 0x40000")
    k.label("B_ask")
    k(f"""buffer_load_dword v{vP+1}, off, s[24:27], 0 sc1
    s_sub_u32 s46, s46, 1
    v_cmp_gt_u32 vcc, 16, v{vP+1}
    s_cbranch_scc1 B_ready
    s_cbranch_vccnz B_ask""")
    k.label("B_ready")
    k("s_barrier"); c.signal(); st(5)
    wo = []
    for g in range(6):
        wo.append([f"s_add_u32 m0, s{sSL}, {L_WO + 16384*g}"] + [(f"buffer_load_dwordx4 v{o16}, s[16:19], s{sWo} offen offset:{1024*i} sc1 lds", "wo") for i in range(4)]
                  + [f"s_add_u32 s{sWo}, s{sWo}, 16384"])
    wo.append([f"s_mul_i32 s46, s{sW}, 3072\ns_sub_u32 s{sWo}, s{sWo}, s46\ns_lshl_b32 s46, s{sW}, 10\ns_add_u32 m0, s46, {L_WO + 98304}", (f"buffer_load_dwordx4 v{o16}, s[16:19], s{sWo} offen sc1 lds", "wo")])
    k(f"s_mul_i32 s46, s{sW}, 3072\ns_add_u32 m0, s46, {L_X}")
    for m in range(3): k(f"buffer_load_dwordx4 v{oX+m}, s[4:7], s{sXo} offen offset:{1024*m} lds", "x")
    e0 = opt.get("wo_early", 2)
    for g in wo[:e0]: k.run(g)
    wo = wo[e0:]
    late2()
    c.poll(vF, 6); st(6)
    k(f"s_mov_b32 m0, s{sSL}")
    for i in range(4): k(f"buffer_load_dwordx4 v{o16}, s[12:15], s{sK} offen offset:{1024*i} sc1 lds", "K")
    k(f"s_lshl_b32 s46, s{sW}, 10\ns_add_u32 m0, s46, 36864\nbuffer_load_dwordx4 v{o16}, s[12:15], s{sKT} offen sc1 lds", "K")
    def ldQ(q):
        k(f"""buffer_load_dwordx4 {a(QM[q],4)}, v{o16}, s[12:15], s{sQ} offen offset:{1024*q} sc1
        buffer_load_dwordx2 {a(QL[q],2)}, v{oQL}, s[12:15], s{sQT} offen offset:{256*q} sc1
        buffer_load_dwordx2 {a(QU[q],2)}, v{oQU}, s[12:15], s{sQT} offen offset:{256*q} sc1""")
    ldQ(0)
    k(f"s_mul_i32 s46, s{sW}, 5120\ns_add_u32 m0, s46, 16384")
    for i in range(4): k(f"buffer_load_dwordx4 v{o16}, s[12:15], s{sV} offen offset:{1024*i} sc1 lds", "V")
    k(f"s_add_u32 m0, s46, {16384+4096}\ns_add_u32 s{sV}, s{sV}, 4096\nbuffer_load_dwordx4 v{o16}, s[12:15], s{sV} offen sc1 lds", "V")
    ldQ(1)
    k.wait_tag("K"); k("s_barrier"); st(7)
    mx = [V(2, 2), V(2, 2)]; mb = [V(2, 2), V(2, 2)]; rc = V(2, 2)
    P = [V(8, 2) for _ in range(3)]
    pool = []
    while V.p + 16 <= 250: pool.append(V(16, 2))
    MM, M8 = "v_mfma_f32_32x32x16_bf16", "v_mfma_f32_32x32x8_bf16"
    items = []
    free = list(pool)
    O = [free.pop(0), None]
    tile = [{}, {}]
    order = [[8, 0] + list(range(1, 8)), [9, 1] + list(range(2, 9))]
    for j in order[0]: tile[0][j] = free.pop(0)
    free.append(tile[0][0])
    free += [tile[0][j] for j in range(1, 8)] + [tile[0][8]]
    for j in order[1]:
        tile[1][j] = free.pop(0)
        if j == 1: free.insert(1, tile[1][1])
    O[1] = free.pop(0)
    def qk(q, pm, pv):
        first = True
        for x, j in enumerate(order[q]):
            T = tile[q][j]
            items.append((f"{MM} {v(T,16)}, {a(KM[j],4)}, {a(QM[q],4)}, 0", pm + x))
            items.append((f"{MM} {v(T,16)}, {a(KT[j//2],4)}, {a((QU if j % 2 else QL)[q],4)}, {v(T,16)}", pm + x))
            if x == 0: continue
            if x == 1:
                T = tile[q][8 + q]
                for r in range(16): items.append((f"v_cndmask_b32 v{T+r}, v{tile[q][j]+r}, v{T+r}, s[{sM+2*r}:{sM+2*r+1}]", pv + x))
            for p in range(8):
                m = mx[q] + p % 2
                if first and p < 2: items.append((f"v_max_f32 v{m}, v{T+2*p}, v{T+2*p+1}", pv + x))
                else: items.append((f"v_max3_f32 v{m}, v{m}, v{T+2*p}, v{T+2*p+1}", pv + x))
            first = False
        m, m1, b = mx[q], mx[q] + 1, mb[q]
        for tx in [f"v_max_f32 v{m}, v{m}, v{m1}", f"v_mov_b32 v{m1}, v{m}", f"v_permlane32_swap_b32 v{m}, v{m1}", f"v_max_f32 v{m}, v{m}, v{m1}",
                   f"v_and_b32 v{b}, v{hi}, v{m}", f"v_sub_f32 v{m}, v{m}, v{b}", f"v_and_b32 v{m1}, v{hi}, v{m}", f"v_sub_f32 v{m}, v{m}, v{m1}",
                   f"v_cvt_pk_bf16_f32 v{b}, v{b}, v{m1}", f"v_cvt_pk_bf16_f32 v{b+1}, v{m}, 0"]:
            items.append((tx, pv + 10))
    pn = [0]
    def pvblk(q, x, j, pm, pv):
        T = tile[q][j]; Pq = P[pn[0] % 3]; pn[0] += 1
        items.append((f"{M8} {v(T,16)}, {a(half,2)}, {v(mb[q],2)}, {v(T,16)}", pm + x))
        for p in range(8):
            items.append((f"v_exp_f32 v{T+2*p}, v{T+2*p}", pv + x)); items.append((f"v_exp_f32 v{T+2*p+1}, v{T+2*p+1}", pv + x))
            items.append((f"v_cvt_pk_bf16_f32 v{Pq+p}, v{T+2*p}, v{T+2*p+1}", pv + x - 0.5))
        def pvm(jj, R, first):
            for t in range(2):
                items.append((f"{MM} {v(O[q],16)}, {a(VV[jj][t],4)}, {v(R+4*t,4)}, {'0' if first and t == 0 else v(O[q],16)}", pm + x - 5))
        if j == 8 + q:
            Pd = P[pn[0] % 3]; pn[0] += 1
            for p in range(8):
                items.append((f"v_and_b32 v{Pd+p}, v{Pq+p}, v{MK+p}", pv + x - 0.5)); items.append((f"v_xor_b32 v{Pq+p}, v{Pq+p}, v{Pd+p}", pv + x - 0.5))
            pvm(j, Pd, False); pvm(q, Pq, False)
        else: pvm(j, Pq, x == 0)
    def fin(q, pv):
        o = O[q]
        items.append((f"v_rcp_f32 v{rc}, v{o+12}", pv))
        for r in range(12): items.append((f"v_mul_f32 v{o+r}, v{o+r}, v{rc}", pv))
        for p in range(6): items.append((f"v_cvt_pk_bf16_f32 v{o+p}, v{o+2*p}, v{o+2*p+1}", pv))
        items.append((f"buffer_store_dwordx4 {v(o,4)}, v{sMn}, s[8:11], s{sO0+q} offen sc1", pv))
        items.append((f"buffer_store_dwordx2 {v(o+4,2)}, v{sTl}, s[8:11], s{sT0+q} offen sc1", pv))
    rdK = lambda j: items.append((f"ds_read_b128 {a(KM[j],4)}, v{aK} offset:{1024*j}", -1))
    rdT = lambda p: items.append((f"ds_read_b64 {a(KT[p],2)}, v{aT} offset:{512*p}", -1))
    rdK(8); rdT(4); rdK(0); rdT(0); rdK(1)
    for p in (1, 2, 3): rdK(2*p); rdT(p); rdK(2*p+1)
    rdK(9)
    tv, tw, dw = opt.get("b_tv", 450), opt.get("b_tw", 600), opt.get("b_dw", 230)
    items.append(("@wait V\ns_barrier", -1, None, tv))
    vorder = [1, 2, 3, 4, 5, 6, 7, 0, 8, 9]
    for g in range(5):
        rd = "\n".join(f"ds_read_b128 {a(VV[j][t],4)}, v{aV} offset:{1280*j+640*t}" for j in vorder[2*g:2*g+2] for t in range(2))
        items.append((f"s_mov_b64 exec, s[{sE}:{sE+1}]\n{rd}\ns_mov_b64 exec, -1", -1, None, tv + 70 * g))
    wq = c.wq; wq.slots = [0, 1, 2]; wq.bufs = [("a", 240 - 16 * i) for i in range(5)]; assert A.p <= 176
    grp, t = [], tw
    for ch in opt.get("b_prog", "obdddooordrdrdo..rdrd"):
        if ch == ".": t += dw; continue
        if ch == "t":
            grp.append((c.touch(c.nt, 251, 250, 46), -1, None, t)); c.nt += 1; continue
        g = joined(wo.pop(0) if ch == "o" else ["@lg0", "s_barrier"] if ch == "b" else wq.dma() if ch == "d" else wq.read())
        grp.append((g[0], -1, g[1], t)); t += dw if ch in "od" else 0 if ch == "b" else opt.get("b_dr", 130)
    assert not wo
    cut = opt.get("b_cut", 99)
    items += grp[:cut]
    qk(0, 0, 0)
    seq0 = list(range(1, 8)) + [8]
    for x, j in enumerate(seq0): pvblk(0, x, j, 100, 300)
    fin(0, 250)
    items += grp[cut:]
    qk(1, 200, 200)
    seq1 = [2, 9] + list(range(3, 9))
    for x, j in enumerate(seq1): pvblk(1, x, j, 400, 500)
    fin(1, 600)
    sch = schedule(items, {}, t0=0)

    if opt.get("v"): print("B est", schedule.last_time, "last group", t)
    k.run(sch)
    st(8)
```

```python
from util import *
Hp = V0

def phase_C(c):
    k, opt, st = c.k, c.opt, c.st
    sT, sT2, sO, sH4, sS, sN, sB = 28, 29, 30, 31, 32, 33, 34
    V = Alloc(V0 + 10); A = Alloc(0)
    t0, t1, aA, aB, aX, vF, oS, oP, oH, oH2 = [V() for _ in range(10)]
    acc = V(20, 2); npre = opt.get("c_pre", 10); fw = [V(20, 2) for _ in range(npre)]
    fo = [A(4) for _ in range(20)]
    k(f"""s_lshl2_add_u32 s{sB}, s{sTB}, s{sW}
    s_mul_i32 s{sO}, s{sB}, 20480
    v_add_u32 v{aA}, {L_WO}, v{o16}
    v_add_u32 v{aB}, {L_WO + 51200}, v{o16}
    s_lshl_b32 s{sT}, s{sTB}, 12
    s_add_u32 s{sT}, s{sT}, {F2*128}
    v_lshl_add_u32 v{vF}, v{vL}, 7, s{sT}
    s_mul_i32 s{sT}, s{sCB}, 160
    s_and_b32 s{sT2}, s{sT}, 32
    s_mul_i32 s{sT}, s{sW}, 3072
    s_add_u32 s{sT2}, s{sT2}, s{sT}
    s_add_u32 s{sT2}, s{sT2}, {L_X}
    v_lshrrev_b32 v{t0}, 2, v{vL}
    v_mul_u32_u24 v{aX}, 192, v{t0}
    v_and_b32 v{t1}, 3, v{vL}
    v_lshl_add_u32 v{aX}, v{t1}, 3, v{aX}
    v_add_u32 v{aX}, s{sT2}, v{aX}
    v_lshlrev_b32 v{t0}, 3, v{t0}
    v_lshl_add_u32 v{oP}, v{t1}, 7, v{t0}
    v_lshl_add_u32 v{oS}, v{t1}, 28, v{t0}
    v_lshrrev_b32 v{t0}, 5, v{vL}
    v_and_b32 v{t1}, 31, v{vL}
    v_lshlrev_b32 v{t1}, 4, v{t1}
    v_lshl_add_u32 v{oH2}, v{t0}, 10, v{t1}
    v_lshl_add_u32 v{oH}, v{t0}, 30, v{t1}
    s_lshr_b32 s{sN}, s{sB}, 1
    s_mul_i32 s{sN}, s{sN}, 40960
    s_mul_i32 s{sT2}, s{sCB}, 5120
    s_add_u32 s{sN}, s{sN}, s{sT2}
    s_and_b32 s{sT2}, s{sB}, 1
    s_lshl_b32 s{sT2}, s{sT2}, 9
    s_add_u32 s{sN}, s{sN}, s{sT2}
    s_add_u32 s{sH4}, s{sN}, 4096
    s_lshl_b32 s{sS}, s{sB}, 10
    s_lshl_b32 s{sT2}, s{sCB}, 7
    s_add_u32 s{sT2}, s{sT2}, s{sS}""")
    srd(k, 16, sWS, HNF, HF_SZ); srd(k, 12, sWS, ST, ST_SZ)
    xr = Hp
    k.wait_tag("x")
    for dt in range(5): k(f"ds_read_b64_tr_b16 {v(xr+2*dt,2)}, v{aX} offset:{32*dt}")
    for p in range(10): k(f"v_lshlrev_b32 v{acc+2*p}, 16, v{xr+p}\nv_and_b32 v{acc+2*p+1}, 0xffff0000, v{xr+p}")
    k(f"v_and_b32 v{aX}, 15, v{vL}\nv_lshlrev_b32 v{aX}, 3, v{aX}\nv_sub_u32 v{aX}, v{o16}, v{aX}")
    def reads(n):
        return [f"ds_read_b128 {v(fw[n%npre]+4*dt,4)}, v{aB if n >= 10 else aA} offset:{(n%10)*5120+1024*dt}" for dt in range(5)]
    k.wait_all(); c.signal(); st(9)
    k(f"""s_barrier
    s_lshl3_add_u32 s{sFl}, s{sTB}, s{sCB}
    s_add_u32 s{sFl}, s{sFl}, {F3}
    s_lshl_b32 s{sFl}, s{sFl}, 7
    s_cmp_eq_u32 s{sW}, 0
    s_cselect_b32 s{sFl}, s{sFl}, {OOB}""")
    wq = c.wq; wq.bufs += [("a", 160 - 16 * i) for i in range(6)]
    wq.run(k, opt.get("s2_prog", "rrrddd"))
    for n in range(npre): k.run(reads(n))
    c.poll(vF, 32); st(10)
    lo = []
    for n in range(20):
        lo.append((f"s_add_u32 s{sO}, s{sO}, 4096\n" if n % 4 == 0 and n else "") + f"buffer_load_dwordx4 {a(fo[n],4)}, v{o16}, s[8:11], s{sO} offen offset:{1024*(n%4)} sc1")
    if opt.get('o_tail', 1):
        for n in range(16, 20):
            lo[n] = (f"s_add_u32 s{sO}, s{sO}, 4096\n" if n == 16 else "") + "\n".join(f"buffer_load_dwordx2 {a(fo[n]+2*z,2)}, v{aX}, s[8:11], s{sO} offen offset:{1024*(n%4)+128*z} sc1" for z in range(2))
    n0 = opt.get("c_lead", 8)
    k.run(lo[:n0]); lo = lo[n0:]
    for n in range(20):
        mf = [f"v_mfma_f32_16x16x32_bf16 {v(acc+4*dt,4)}, {a(fo[n],4)}, {v(fw[n%npre]+4*dt,4)}, {v(acc+4*dt,4)}" for dt in range(5)]
        fill = reads(n + npre - 1) if 0 < n and n + npre - 1 < 20 else []
        k.run(interleave(mf, lo[:1] + fill)); lo = lo[1:]
        if n == 0: st(11)
    st(12)
    s1, s2 = fw[0], fw[0] + 4; X = fw[0] + 8; Y = fw[0] + 12; Np = fw[1]; pl = fw[2]; mr = fw[2] + 4
    it = []
    for r in range(4):
        it.append(f"v_add_f32 v{s1+r}, v{acc+r}, v{acc+4+r}"); it.append(f"v_mul_f32 v{s2+r}, v{acc+r}, v{acc+r}")
    for dt in range(1, 5):
        for r in range(4):
            if dt > 1: it.append(f"v_add_f32 v{s1+r}, v{s1+r}, v{acc+4*dt+r}")
            it.append(f"v_fmac_f32 v{s2+r}, v{acc+4*dt+r}, v{acc+4*dt+r}")
    k.run(it)
    D_ = lambda d, x, ctl, bm: f"v_add_f32_dpp v{d}, v{x}, v{x} {ctl} row_mask:0xf bank_mask:{bm}"
    for i in range(2):
        for e, s_ in enumerate((s1, s2)): k(D_(X+2*e+i, s_+i, "row_ror:8", "0xf"))
    for i in range(2):
        for e, s_ in enumerate((s1, s2)): k(D_(X+2*e+i, s_+2+i, "row_ror:8", "0xc"))
    cv = [f"v_cvt_pk_bf16_f32 v{Hp+p}, v{acc+2*p}, v{acc+2*p+1}" for p in range(10)]
    for e in range(2): k(D_(Y+e, X+2*e, "row_half_mirror", "0xf"))
    k.run(cv[:1])
    for e in range(2): k(D_(Y+e, X+2*e+1, "row_half_mirror", "0xa"))
    k.run(cv[1:2])
    for e in range(2): k(D_(Y+e, Y+e, "quad_perm:[1,0,3,2]", "0xf"))
    k.run(cv[2:3])
    for e in range(2): k(D_(Y+e, Y+e, "quad_perm:[2,3,0,1]", "0xf"))
    k(f"buffer_store_dwordx2 {v(Y,2)}, v{oS}, s[12:15], s{sT2} offen sc1")
    k.run(cv[3:])
    k("s_barrier")
    wq.slots = [3, 4, 5, 6, 7, 8, 9] + wq.slots
    wq.run(k, opt.get("x_prog", "ddrrr"))
    k(f"s_mov_b32 s{sT}, 0x40000")
    k.label("C_poll")
    k(f"""buffer_load_dwordx2 {v(pl,2)}, v{oP}, s[12:15], s{sS} offen sc1
    buffer_load_dwordx2 {v(pl+2,2)}, v{oP}, s[12:15], s{sS} offen offset:512 sc1
    s_sub_u32 s{sT}, s{sT}, 1
    v_cmp_eq_u32 vcc, -1.0, v{pl+1}
    v_cmp_eq_u32 s[40:41], -1.0, v{pl+3}
    s_cbranch_scc1 C_go
    s_or_b64 vcc, vcc, s[40:41]
    s_cbranch_scc1 C_poll""")
    k.label("C_go")
    st(13)
    k(f"v_add_f32 v{pl}, v{pl}, v{pl+2}\nv_add_f32 v{pl+1}, v{pl+1}, v{pl+3}")
    for ctl in ("quad_perm:[1,0,3,2]", "quad_perm:[2,3,0,1]"):
        for e in range(2): k(D_(pl+e, pl+e, ctl, "0xf"))
    k(f"""v_mul_f32 v{pl}, {f32(-1/640)}, v{pl}
    v_mul_f32 v{pl+1}, {f32(1/640)}, v{pl+1}
    v_fma_f32 v{pl+1}, -v{pl}, v{pl}, v{pl+1}
    v_max_f32 v{pl+1}, 0, v{pl+1}
    v_add_f32 v{pl+2}, {f32(1e-5)}, v{pl+1}
    v_rsq_f32 v{pl+2}, v{pl+2}
    v_mov_b32 v{t0}, {f32(1e-5)}
    v_mul_f32 v{pl+1}, v{pl+1}, v{pl+2}
    v_fmac_f32 v{t0}, v{pl+1}, v{pl+2}
    v_rsq_f32 v{t0}, v{t0}
    v_mul_f32 v{pl+1}, v{pl+2}, v{t0}
    v_mul_f32 v{pl}, v{pl}, v{pl+1}""")
    for r in range(4): k(f"v_mov_b32_dpp v{mr+r}, v{pl+1} row_newbcast:{4*r} row_mask:0xf bank_mask:0xf")
    for r in range(4): k(f"v_mov_b32_dpp v{mr+4+r}, v{pl} row_newbcast:{4*r} row_mask:0xf bank_mask:0xf")
    for p in range(10): k(f"v_pk_fma_f32 {v(acc+2*p,2)}, {v(acc+2*p,2)}, {v(mr+2*(p%2),2)}, {v(mr+4+2*(p%2),2)}")
    for p in range(10): k(f"v_cvt_pk_bf16_f32 v{Np+p}, v{acc+2*p}, v{acc+2*p+1}")
    for pr in range(2):
        k(f"v_permlane32_swap_b32 v{Np+4*pr}, v{Np+4*pr+2}\nv_permlane32_swap_b32 v{Np+4*pr+1}, v{Np+4*pr+3}")
        k(f"buffer_store_dwordx4 {v(Np+4*pr,4)}, v{oH2}, s[16:19], s{sN} offen offset:{2048*pr} sc1", "hn")
    k(f"v_permlane32_swap_b32 v{Np+8}, v{Np+10}\nv_permlane32_swap_b32 v{Np+9}, v{Np+11}")
    k(f"buffer_store_dwordx4 {v(Np+8,4)}, v{oH}, s[16:19], s{sH4} offen sc1", "hn")
    st(14)
```

```python
from util import *
from pC import Hp
import math

def phase_DE(c):
    k, opt, st = c.k, c.opt, c.st
    nfl = opt.get("de_fl", 10); nring = nfl + 2; depth = (nfl + 4) // 5
    sT, sT2, sX, sW2, sO, sO2, sXE, sOE = 28, 29, 30, 31, 32, 33, 34, 35
    V = Alloc(V0 + 10); A = Alloc(0)
    t0, t1, t2, oXa, oXb, vF, oB = [V() for _ in range(7)]
    o2, aW, aR = V(4), V(8), V(4)
    bi = V(4, 2); bl = V(2, 2); idn = V(2, 2); oO = V(3); aT_, aT2 = V(), V()
    acc = V(80, 2); red = V(60, 2); pk = V(12, 2); fw = [V(16, 2), V(16, 2)]; assert V.p <= aW0
    fx = [A(4) for _ in range(max(nring, 5))]
    assert A.p <= 80
    wq = c.wq
    k(f"s_load_dwordx2 s[4:5], s[0:1], {KA_B1}\ns_load_dwordx2 s[24:25], s[0:1], {KA_B2}\ns_load_dwordx2 s[36:37], s[0:1], {KA_OUT}")
    wq.run(k, opt.get("cd_prog", "d"))
    w_offsets(k, o2, 4096, t0, t1, t2, sT, 448, sTB)
    for x in range(8): k(f"v_xor_b32 v{aW+x}, {65536*(1+x//4)}, v{aW0+x%4}")
    wq.aW += [aW, aW + 4]; wq.w2 = (o2, sW2); wq.bufs += [("v", b) for b in fw]
    k(f"""s_add_u32 s{sT}, s{sSL}, 32768
    v_add_u32 v{aR}, s{sT}, v{o16}
    s_mul_i32 s{sT}, s{sTB}, {opt.get("e_rot", 0)}
    s_bfe_u32 s{sT}, s{sT}, 0x40004
    s_min_u32 s{sT}, s{sT}, 13
    s_lshl_b32 s{sW2}, s{sT}, 17
    s_mul_i32 s{sXE}, s{sT}, 40960
    s_mul_i32 s{sT}, s{sFB}, {opt.get("d_rot", 0)}
    s_bfe_u32 s{sT}, s{sT}, 0x40004
    s_mul_i32 s{sX}, s{sT}, 40960
    s_mul_i32 s{sT}, s{sW}, {16*40960}
    s_mul_i32 s{sT2}, s{sDB}, 5120
    s_add_u32 s{sT}, s{sT}, s{sT2}
    v_add_u32 v{oXa}, s{sT}, v{o16}
    v_add_u32 v{oXb}, 4096, v{oXa}
    s_lshl_b32 s{sT}, s{sW}, 6
    s_add_u32 s{sT}, s{sT}, s{sDB}
    s_add_u32 s{sT}, s{sT}, {F3}
    s_lshl_b32 s{sT}, s{sT}, 7
    v_lshl_add_u32 v{vF}, v{vL}, 10, s{sT}""")
    for x in range(1, 4): k(f"v_xor_b32 v{aR+x}, {x*4096}, v{aR}")
    srd(k, 4, 4, 0, F*2); srd(k, 24, 24, 0, S*2); srd(k, 8, sWS, UF, UF_SZ); srd(k, 12, 36, 0, S*D*2)
    k.wait_tag("hn"); k("s_barrier"); c.signal(); st(15)
    k(f"s_cmp_ge_u32 s{sJ}, 27\ns_cbranch_scc1 D_skip")
    snap = k.snapshot(); wq.log = []
    k(f"""s_lshl_b32 s{sT}, s{sFB}, 7
    s_lshl_b32 s{sT2}, s{sW}, 5
    s_add_u32 s{sT}, s{sT}, s{sT2}
    v_lshlrev_b32 v{oB}, 3, v{t1}
    buffer_load_dwordx2 {v(bl,2)}, v{oB}, s[4:7], s{sT} offen""")
    wq.run(k, opt.get("s3_prog", "ddddrr"))
    k(f"""s_lshr_b32 s{sT}, s{sW}, 1
    s_lshl1_add_u32 s{sT}, s{sFB}, s{sT}
    s_mul_i32 s{sO}, s{sT}, 40960
    s_mul_i32 s{sT}, s{sDB}, 5120
    s_add_u32 s{sO}, s{sO}, s{sT}
    s_and_b32 s{sT}, s{sW}, 1
    s_lshl_b32 s{sT}, s{sT}, 9
    s_add_u32 s{sO}, s{sO}, s{sT}
    s_add_u32 s{sO2}, s{sO}, 4096
    v_lshrrev_b32 v{t0}, 5, v{vL}
    v_and_b32 v{t2}, 31, v{vL}
    v_lshlrev_b32 v{t2}, 4, v{t2}
    v_lshl_add_u32 v{oO}, v{t0}, 10, v{t2}
    v_lshl_add_u32 v{oO+1}, v{t0}, 30, v{t2}
    s_lshl3_add_u32 s{sFl}, s{sFB}, s{sDB}
    s_add_u32 s{sFl}, s{sFl}, {F4}
    s_lshl_b32 s{sFl}, s{sFl}, 7
    s_cmp_eq_u32 s{sW}, 0
    s_cselect_b32 s{sFl}, s{sFl}, {OOB}""")

    def gemm(E, s0):
        nst, r, sx, q0 = (14, 8, sXE, 16) if E else (16, 16, sX, 0)
        def loadX(n):
            if n >= 5 * nst: return []
            dt = n % 5
            it = f"buffer_load_dwordx4 {a(fx[n%nring],4)}, v{oXb if dt == 4 else oXa}, s[{r}:{r+3}], s{sx} offen offset:{1024*(dt%4)} sc1"
            if dt < 4: return [it]
            if opt.get("e_rot" if E else "d_rot"): return [it, f"s_add_u32 s{sx}, s{sx}, 40960\ns_cmp_eq_u32 s{sx}, {40960*nst}\ns_cselect_b32 s{sx}, 0, s{sx}"]
            return [it, f"s_add_u32 s{sx}, s{sx}, 40960"]
        assert wq.nr > q0
        c.poll(vF, 7 if E else 8); st(s0)
        if not E:
            pass
        for n in range(nfl): k.run(loadX(n))
        if not E:
            for p in range(2): k(f"v_lshlrev_b32 v{bi+2*p}, 16, v{bl+p}\nv_and_b32 v{bi+2*p+1}, 0xffff0000, v{bl+p}")
            c0 = -2 * math.sqrt(2 / math.pi) * math.log2(math.e)
            k(f"s_mov_b32 s44, {f32(c0*0.044715)}\ns_mov_b32 s45, s44\nv_mov_b32 v{bl}, {f32(c0)}\nv_mov_b32 v{bl+1}, v{bl}")
        lead = opt.get("w_lead", 4); hold = False; landed = [wq.nd] * depth
        for i in range(nst):
            mf = []
            order = [(x, dt) for dt in range(5) for x in (1, 2, 3)] + [(0, dt) for dt in range(5)] if i == nst - 1 else [(x, dt) for dt in range(5) for x in range(4)]
            for x, dt in order:
                X, W, T = a(fx[(5*i+dt)%nring],4), wq.frag(q0 + i, x), v(acc+20*x+4*dt,4)
                cc = T if (i or (E and x == 0)) else (v(bi,4) if x == 0 else "0")
                mf.append(f"v_mfma_f32_16x16x32_bf16 {T}, {X if E else W}, {W if E else X}, {cc}")
            ld = []
            if i == nst - 6: hold = True
            if hold: wq.slots = [x for x in wq.slots if x not in (2, 3, 4, 5)]
            n0 = wq.nd
            if wq.nd <= q0 + i + lead and wq.nd < q0 + nst or i >= nst - opt.get("w2_d", depth): ld += wq.dma()
            if i < nst - 1:
                rd = wq.read() if wq.nr < n0 and (wq.nr <= q0 + i + 1 or wq.nr < landed[0]) else []
                assert wq.nr > q0 + i + 1
                fill = ld + rd; seq = []
                for dt in range(5):
                    part = fill[len(fill)*dt//5:len(fill)*(dt+1)//5]
                    seq += interleave(mf[4*dt:4*dt+4], loadX(5*i + dt + nfl) + part)
                k.run(seq)
                landed = landed[1:] + [n0]
            else:
                assert all(wq.slot[q] not in (2, 3, 4, 5) for q in range(wq.nr, wq.nd))
                wr = [f"ds_write_b128 v{aR}, {v(acc+20*x+4*dt,4)} offset:{(((x-1)*5+dt)//4)*16384 + (((x-1)*5+dt)%4)*1024}" for x, dt in order[:15]]
                k.run(interleave(mf[:3], ld) + interleave(mf[3:18], wr) + mf[18:])
            wq.done(q0 + i)
            if i == 0: st(s0 + 1)
        st(s0 + 2)
        k.wait_all(vm=False); k("s_barrier")
    def reduce_items():
        it = []
        for dt in range(5):
            for x in (1, 2, 3):
                n = (x - 1) * 5 + dt
                it.append((f"ds_read_b128 {v(red+20*(x-1)+4*dt,4)}, v{aR+x} offset:{(n//4)*16384 + (n%4)*1024}", -1))
        return it
    def add(dt):
        it = []
        for p in range(2):
            r = 4 * dt + 2 * p
            it += [f"v_pk_add_f32 {v(acc+r,2)}, {v(acc+r,2)}, {v(red+r,2)}", f"v_pk_add_f32 {v(red+20+r,2)}, {v(red+20+r,2)}, {v(red+40+r,2)}"]
        for p in range(2):
            r = 4 * dt + 2 * p
            it += [f"v_pk_add_f32 {v(acc+r,2)}, {v(acc+r,2)}, {v(red+20+r,2)}"]
        return it
    def e_setup():
        k(f"""s_lshl_b32 s{sT}, s{sTB}, 7
        s_lshl_b32 s{sT2}, s{sW}, 5
        s_add_u32 s{sT}, s{sT}, s{sT2}
        v_and_b32 v{t0}, 15, v{vL}
        v_lshlrev_b32 v{oB}, 1, v{t0}
        buffer_load_ushort v{bl}, v{oB}, s[24:27], s{sT} offen
        s_mul_i32 s{sT}, s{sW}, {14*40960}
        s_mul_i32 s{sT2}, s{sCB}, 5120
        s_add_u32 s{sT}, s{sT}, s{sT2}
        v_add_u32 v{oXa}, s{sT}, v{o16}
        v_add_u32 v{oXb}, 4096, v{oXa}
        s_mul_i32 s{sT}, s{sW}, 7
        v_add_u32 v{vF}, s{sT}, v{vL}
        v_min_u32 v{vF}, 26, v{vF}
        s_add_u32 s{sT}, s{sCB}, {F4}
        s_lshl_b32 s{sT}, s{sT}, 7
        v_lshl_add_u32 v{vF}, v{vF}, 10, s{sT}
        v_lshlrev_b32 v{t2}, 2, v{t1}
        v_sub_u32 v{t0}, v{t0}, v{t2}
        v_mov_b32 v{t2}, 0x3f80""")
        for p in range(2):
            k(f"""v_cmp_eq_u32 vcc, {2*p}, v{t0}
            v_cndmask_b32 v{idn+p}, 0, v{t2}, vcc
            v_cmp_eq_u32 vcc, {2*p+1}, v{t0}
            v_cndmask_b32_e64 v{idn+p}, v{idn+p}, 1.0, vcc""")
        k(f"""s_mul_i32 s{sOE}, s{sCB}, 160
        s_and_b32 s{sT2}, s{sOE}, 32
        s_sub_u32 s{sOE}, s{sOE}, s{sT2}
        s_lshl2_add_u32 s{sT}, s{sTB}, s{sW}
        s_mul_i32 s{sT}, s{sT}, 20480
        s_add_u32 s{sOE}, s{sOE}, s{sT}
        v_add_u32 v{aT2}, s{sSL}, v{o16}
        s_add_u32 s{sT}, s{sSL}, s{sT2}
        v_mul_u32_u24 v{aT_}, 96, v{oB}
        v_lshl_add_u32 v{aT_}, v{t1}, 3, v{aT_}
        v_add_u32 v{aT_}, s{sT}, v{aT_}
        s_lshr_b32 s{sT2}, s{sT2}, 4""")
        for m in range(3):
            k(f"""v_add_u32 v{t0}, {64*m}, v{vL}
            v_mul_u32_u24 v{t2}, 5462, v{t0}
            v_lshrrev_b32 v{t2}, 16, v{t2}
            v_mul_u32_u24 v{oO+m}, {1280-192}, v{t2}
            v_lshl_add_u32 v{oO+m}, v{t0}, 4, v{oO+m}
            v_mul_u32_u24 v{t2}, 12, v{t2}
            v_sub_u32 v{t0}, v{t0}, v{t2}
            v_subrev_u32 v{t0}, s{sT2}, v{t0}
            v_cmp_gt_u32 vcc, 10, v{t0}
            v_mov_b32 v{t2}, 0x40000000
            v_cndmask_b32 v{oO+m}, v{t2}, v{oO+m}, vcc""")

    if opt.get("v"): print("staged before D:", wq.nd, wq.nr)
    gemm(False, 16)
    wq.slots = [x for x in wq.slots if x not in (2, 3, 4, 5)]
    items = reduce_items()
    for n, ch in enumerate(opt.get("de_prog", "dd")):
        g = joined(wq.dma() if ch == "d" else wq.read()); items.append((g[0], -1, g[1], opt.get("de_t0", 100) + n * opt.get("de_dt", 200)))
    for dt in range(5):
        it = add(dt)
        r = 4 * dt; z = red + r
        for p in (0, 2): it.append(f"v_pk_mul_f32 {v(z+p,2)}, {v(acc+r+p,2)}, {v(acc+r+p,2)}")
        for p in (0, 2): it.append(f"v_pk_fma_f32 {v(z+p,2)}, {v(z+p,2)}, s[44:45], {v(bl,2)}")
        for p in (0, 2): it.append(f"v_pk_mul_f32 {v(z+p,2)}, {v(z+p,2)}, {v(acc+r+p,2)}")
        for p in range(4): it.append(f"v_exp_f32 v{z+p}, v{z+p}")
        for p in (0, 2): it.append(f"v_pk_add_f32 {v(z+p,2)}, {v(z+p,2)}, 1.0 op_sel_hi:[1,0]")
        for p in range(4): it.append(f"v_rcp_f32 v{z+p}, v{z+p}")
        for p in (0, 2): it.append(f"v_pk_mul_f32 {v(z+p,2)}, {v(z+p,2)}, {v(acc+r+p,2)}")
        for p in range(2): it.append(f"v_cvt_pk_bf16_f32 v{pk+2*dt+p}, v{z+2*p}, v{z+2*p+1}")
        items += [(x, dt) for x in it]
        if dt % 2 == 1 or dt == 4:
            b = pk + 4 * (dt // 2)
            items += [(f"v_permlane32_swap_b32 v{b}, v{b+2}", dt), (f"v_permlane32_swap_b32 v{b+1}, v{b+3}", dt)]
            if dt < 4: items.append((f"buffer_store_dwordx4 {v(b,4)}, v{oO}, s[8:11], s{sO} offen offset:{2048*(dt//2)} sc1", dt, "u"))
            else: items.append((f"buffer_store_dwordx4 {v(b,4)}, v{oO+1}, s[8:11], s{sO2} offen sc1", dt, "u"))
    k.run(schedule(items))
    if opt.get("v"): print("D epilogue est", schedule.last_time)
    st(19)
    wq.run(k, opt.get("dd_prog", "dd"))
    k.label("E_join")
    replay = [it for q, its in wq.log if q >= 16 for it in its]
    e_setup()
    k.wait_tag("u"); k("s_barrier"); c.signal(); st(20)
    wq.slots = [2, 3, 4, 5] + wq.slots
    wq.run(k, opt.get("s4_prog", "ddddrrdd"))
    if opt.get("v"): print("staged before E:", wq.nd - 16, wq.nr - 16)
    k(f"v_lshlrev_b32 v{bi}, 16, v{bl}")
    for r in range(1, 4): k(f"v_mov_b32 v{bi+r}, v{bi}")
    for dt in range(5): k(f"v_mfma_f32_16x16x16_bf16 {v(acc+4*dt,4)}, {v(Hp+2*dt,2)}, {v(idn,2)}, {v(bi,4)}")
    gemm(True, 21)
    items = reduce_items()
    for dt in range(5):
        it = add(dt) + [f"v_cvt_pk_bf16_f32 v{pk+2*dt+p}, v{acc+4*dt+2*p}, v{acc+4*dt+2*p+1}" for p in range(2)]
        items += [(x, dt) for x in it + [f"ds_write_b64 v{aT_}, {v(pk+2*dt,2)} offset:{32*dt}"]]
    k.run(schedule(items))
    for m in range(3): k(f"ds_read_b128 {v(red+4*m,4)}, v{aT2} offset:{1024*m}")
    for m in range(3): k(f"buffer_store_dwordx4 {v(red+4*m,4)}, v{oO+m}, s[12:15], s{sOE} offen")
    st(24)
    if c.on: k.wait_all(); st(25)
    c.flush()
    k.label("K_exit")
    k("s_endpgm")
    k.restore(snap); k.label("D_skip")
    k.wait_all()
    k.run(replay)
    k(f"s_mov_b32 s{sFl}, {OOB}")
    k.wait_all()
    k("s_branch E_join")
```

```python
from asm import *
from layout import *
import struct

def srd(k, r, src, off, size):
    if off:
        k(f"s_add_u32 s{r}, s{src}, {hex(off)}\ns_addc_u32 s{r+1}, s{src+1}, 0")
    elif src != r:
        k(f"s_mov_b32 s{r}, s{src}\ns_mov_b32 s{r+1}, s{src+1}")
    k(f"s_mov_b32 s{r+2}, {hex(size)}\ns_mov_b32 s{r+3}, 0x20000")

def f32(x): return hex(struct.unpack("<I", struct.pack("<f", x))[0])

sW, sXC, sJ = 3, 84, 85
SYR = 80
sWS = 86
WR = 88
sWt, sSL = 92, 93
sTB, sCB, sDB, sFB = 94, 95, 98, 99
sFl = 47
vL, o16, vST, vP = 1, 2, 3, 4
oW = 6
vTD = 250
aW0 = 252
V0 = 10
LDS_ALL = 163840
L_X, L_WO = 49152, 61440
OOB = 0x30000000

class Ctx:
    def __init__(self, opt):
        self.opt, self.k, self.np = opt, K(), 0
        self.on = opt.get("stamp"); self.wq = WQ()
    def st(self, i):
        if not self.on: return
        self.k(f"{'s_memtime' if self.on == 2 else 's_memrealtime'} s[96:97]\nv_writelane_b32 v{vST}, s96, {i}")
    def x(self, name):
        xs = self.opt.get("xs", [])
        if name in xs: self.st(26 + xs.index(name))
    def flush(self):
        if not self.on: return
        k = self.k
        srd(k, 4, sWS, TS, 0x40000)
        k(f"s_lshl2_add_u32 s28, s2, s{sW}\ns_lshl_b32 s28, s28, 8\nv_lshlrev_b32 v{vP}, 2, v{vL}\nbuffer_store_dword v{vST}, v{vP}, s[4:7], s28 offen")
    def signal(self):
        self.k(f"""s_mov_b64 exec, 1
        buffer_store_dword v{vP}, off, s[{SYR}:{SYR+3}], s{sFl} sc1
        s_mov_b64 exec, -1""")
    def poll(self, voff, lanes, sc=46):
        k = self.k; n = self.np; self.np += 1
        k(f"s_mov_b32 exec_lo, {(1 << lanes) - 1}\ns_mov_b32 exec_hi, 0\ns_mov_b32 s{sc}, 0x40000")
        k.label(f"poll{n}")
        k(f"""buffer_load_dword v{vP+1}, v{voff}, s[{SYR}:{SYR+3}], 0 offen sc1
        s_sub_u32 s{sc}, s{sc}, 1
        v_cmp_ne_u32 vcc, v{vP}, v{vP+1}
        s_cbranch_scc1 pollx{n}
        s_cbranch_vccnz poll{n}""")
        k.label(f"pollx{n}")
        k("s_mov_b64 exec, -1")
    def maps(self, sT, sT2):
        m = self.opt.get("m", 8); lm = m.bit_length() - 1
        self.k(f"""s_and_b32 s{sT}, s{sXC}, {8 // m - 1}
        s_lshl_b32 s{sT}, s{sT}, {lm}
        s_lshr_b32 s{sT2}, s{sXC}, {3 - lm}
        s_and_b32 s{sCB}, s{sJ}, {m - 1}
        s_add_u32 s{sCB}, s{sCB}, s{sT}
        s_lshl_b32 s{sTB}, s{sT2}, 5
        s_add_u32 s{sTB}, s{sTB}, s{sJ}
        s_lshr_b32 s{sTB}, s{sTB}, {lm}
        s_mul_i32 s{sFB}, s{sT2}, 27
        s_add_u32 s{sFB}, s{sFB}, s{sJ}
        s_and_b32 s{sDB}, s{sFB}, {m - 1}
        s_add_u32 s{sDB}, s{sDB}, s{sT}
        s_lshr_b32 s{sFB}, s{sFB}, {lm}
        s_lshl_b32 s{sSL}, s{sW}, 12""")
    def touch_setup(self, vt, sT):
        n = self.opt.get("tn", 2); per = 54 // n
        self.k(f"v_min_u32 v{vt}, {per - 1}, v{vL}\ns_mul_i32 s{sT}, s2, 216\nv_add_u32 v{vt}, s{sT}, v{vt}\ns_mul_i32 s{sT}, s{sW}, {per}\nv_add_lshl_u32 v{vt}, v{vt}, s{sT}, 7")
    def touch(self, i, vt, dst, st):
        n = self.opt.get("tn", 2); r = WR if i < n else 20
        return f"s_movk_i32 s{st}, {(i % n) * (216 // n) * 128}\nbuffer_load_dword v{dst}, v{vt}, s[{r}:{r+3}], s{st} offen"
    def w1_setup(self, t0, t1, t2, sT):
        k = self.k
        w_offsets(k, oW, 3456, t0, t1, t2, sT, 512, sFB)
        k(f"""s_mul_i32 s{sT}, s{sFB}, {self.opt.get("d_rot", 0)}
        s_bfe_u32 s{sT}, s{sT}, 0x40004
        s_mul_i32 s{sWt}, s{sT}, {32*3456}
        s_cmp_ge_u32 s{sJ}, 27
        s_cselect_b32 s{WR+2}, 0, s{WR+2}""")
        k(f"""v_bfe_u32 v{t0}, v{vL}, 2, 3
        v_lshrrev_b32 v{t2}, 5, v{vL}
        v_lshl_add_u32 v{t2}, v{t2}, 4, v{t0}
        v_lshlrev_b32 v{t2}, 7, v{t2}
        v_lshrrev_b32 v{t0}, 1, v{t0}
        v_xor_b32 v{t0}, s{sW}, v{t0}
        v_lshl_add_u32 v{t2}, v{t0}, 5, v{t2}
        v_and_b32 v{t0}, 3, v{vL}
        v_lshl_add_u32 v{t2}, v{t0}, 3, v{t2}
        v_add_u32 v{aW0}, s{sSL}, v{t2}""")
        for x in range(1, 4): k(f"v_xor_b32 v{aW0+x}, {32*x}, v{aW0}")

class WQ:
    def __init__(self):
        self.nd = self.nr = 0
        self.slots, self.bufs = [], []
        self.slot, self.buf, self.last = {}, {}, {}
        self.aW = [aW0]; self.w2 = None; self.log = []
    def dma(self, n=1):
        out = []
        for _ in range(n):
            q = self.nd
            if q == 30 or not self.slots or (q >= 16 and not self.w2): break
            sl = self.slots.pop(0); self.slot[q] = sl; self.nd += 1
            it = [f"@wait r{self.last[sl]}"] if sl in self.last else []
            it += load_w(q, sl, oW, WR, sWt, 32*3456, 16, "w") if q < 16 else load_w(q, sl, self.w2[0], 20, self.w2[1], 32*4096, 14, "w")
            self.log.append((q, it)); out += it
        return out
    def read(self, n=1):
        out = []
        for _ in range(n):
            q = self.nr
            if q == self.nd or not self.bufs or self.slot[q] // 4 >= len(self.aW): break
            b = self.bufs.pop(0); self.buf[q] = b; sl = self.slot[q]; self.nr += 1
            it = [f"@wait w{q}"] + [(f"ds_read_b64_tr_b16 {b[0]}[{b[1]+4*x+2*u}:{b[1]+4*x+2*u+1}], v{self.aW[sl//4]+x} offset:{(sl%4)*16384 + 1024*u}", f"r{q}") for x in range(4) for u in range(2)]
            self.slots.append(sl); self.last[sl] = q
            self.log.append((q, it)); out += it
        return out
    def frag(self, q, x): b = self.buf[q]; return f"{b[0]}[{b[1]+4*x}:{b[1]+4*x+3}]"
    def done(self, q): self.bufs.append(self.buf[q])
    def run(self, k, prog):
        for ch in prog: k.run(self.dma() if ch == "d" else self.read())

def w_offsets(k, o, RS, t0, t1, t2, sT, rows, sN):
    k(f"""v_lshrrev_b32 v{t0}, 3, v{vL}
    v_mul_u32_u24 v{t0}, {RS}, v{t0}
    v_lshrrev_b32 v{t1}, 4, v{vL}
    v_lshlrev_b32 v{t2}, 1, v{t1}
    v_xor_b32 v{t2}, v{t2}, v{vL}
    v_and_b32 v{t2}, 7, v{t2}
    v_lshl_add_u32 v{o}, v{t2}, 4, v{t0}
    s_mul_i32 s{sT}, s{sW}, {rows*RS}
    v_add_u32 v{o}, s{sT}, v{o}
    s_lshl_b32 s{sT}, s{sN}, 7
    v_add_u32 v{o}, s{sT}, v{o}""")
    for n in range(1, 4): k(f"v_add_u32 v{o+n}, {n*(8*RS-1024)}, v{o}")

def load_w(i, slot, o, r, so, step, nst, tag):
    it = [f"s_add_u32 m0, s{sSL}, {slot*16384}"]
    it += [(f"buffer_load_dwordx4 v{o+n}, s[{r}:{r+3}], s{so} offen offset:{1024*n} lds", f"{tag}{i}") for n in range(4)]
    it += [f"s_add_u32 s{so}, s{so}, {step}\ns_cmp_eq_u32 s{so}, {step*nst}\ns_cselect_b32 s{so}, 0, s{so}"]
    return it
def joined(items):
    return "\n".join(x[0] if isinstance(x, tuple) else x for x in items), next((x[1] for x in items if isinstance(x, tuple)), None)
```

```python
from util import *
import math

def phase_A(c):
    k, opt, st = c.k, c.opt, c.st
    qf = opt.get("a_fl", "sc1"); nt = ""; vPF = 251; ta = opt.get("ta", [28, 30]); c.nt = len(ta)
    sRT, sCT, sKX, sKW, sM0X, sM0W, sT, sT2, sBM, sBT, sSC = 28, 29, 30, 31, 32, 33, 34, 35, 42, 43, 46
    k("s_cmp_ge_u32 s2, 256\ns_cbranch_scc1 K_exit")
    k(f"s_load_dwordx4 s[36:39], s[0:1], {KA_X}\ns_load_dwordx2 s[{sWS}:{sWS+1}], s[0:1], {KA_WS}\ns_load_dwordx2 s[24:25], s[0:1], {KA_DBG}")
    k(f"s_load_dwordx2 s[40:41], s[0:1], {KA_WO}\ns_load_dwordx2 s[{WR}:{WR+1}], s[0:1], {KA_W1}\ns_load_dwordx2 s[20:21], s[0:1], {KA_W2}")
    V = Alloc(V0)
    t0, t1, t2, t3, vD, vT = V(), V(), V(), V(), vP + 1, V()
    k(f"v_lshrrev_b32 v{t0}, 6, v0\nv_and_b32 v{vL}, 63, v0\nv_readfirstlane_b32 s{sW}, v{t0}")
    if opt.get("pf_code"):
        k(f"s_getpc_b64 s[44:45]\nv_lshlrev_b32 v{t1}, 7, v0\nv_min_u32 v{t1}, {opt['pf_code'] - 128}, v{t1}\nglobal_load_dword v{vT}, v{t1}, s[44:45]")
    k(f"s_and_b32 s{sXC}, s2, 7\ns_lshr_b32 s{sJ}, s2, 3\nv_lshlrev_b32 v{o16}, 4, v{vL}\nv_mov_b32 v{vP}, 1")
    st(0)
    k(f"s_cmp_ge_u32 s{sJ}, 30\ns_cbranch_scc1 A_prep")
    snap0 = k.snapshot()
    k(f"s_and_b32 s{sRT}, s{sXC}, 1\ns_mul_i32 s{sRT}, s{sRT}, 30\ns_add_u32 s{sT2}, s{sJ}, s{sRT}\ns_lshr_b32 s{sCT}, s{sT2}, 2\ns_and_b32 s{sRT}, s{sT2}, 3\ns_lshr_b32 s{sT}, s{sXC}, 1\ns_lshl2_add_u32 s{sRT}, s{sT}, s{sRT}")
    offX, offW = V(4), V(4)
    adrX, adrW = V(4), V(16)
    k(f"""s_lshl2_add_u32 s{sT}, s{sRT}, s{sW}
    s_mul_i32 s{sT}, s{sT}, {32*1280}
    v_lshrrev_b32 v{t0}, 3, v{vL}
    v_mul_u32_u24 v{t0}, 1280, v{t0}
    v_add_u32 v{t0}, s{sT}, v{t0}
    v_lshrrev_b32 v{t1}, 4, v{vL}
    v_and_b32 v{t3}, 7, v{vL}
    v_xor_b32 v{t3}, v{t3}, v{t1}
    v_lshl_add_u32 v{offX}, v{t3}, 4, v{t0}
    v_xor_b32 v{t3}, 4, v{t3}
    v_lshl_add_u32 v{offX+1}, v{t3}, 4, v{t0}
    v_add_u32 v{offX+1}, 9216, v{offX+1}
    v_add_u32 v{offX+2}, {2*9216}, v{offX}
    v_add_u32 v{offX+3}, {2*9216}, v{offX+1}""")
    k(f"""s_mul_i32 s{sT}, s{sW}, {16*3840}
    s_lshl_b32 s{sT2}, s{sCT}, 8
    s_add_u32 s{sT}, s{sT}, s{sT2}
    v_mul_u32_u24 v{t0}, 3840, v{t1}
    v_add_u32 v{t0}, s{sT}, v{t0}
    v_lshlrev_b32 v{t3}, 2, v{t1}
    v_xor_b32 v{t3}, v{t3}, v{vL}
    v_and_b32 v{t3}, 15, v{t3}
    v_lshl_add_u32 v{offW}, v{t3}, 4, v{t0}""")
    a16 = opt.get("a16", 1)
    for i in range(1, 4): k(f"v_add_u32 v{offW+i}, {i*(4*3840-1024)}, v{offW}")
    if a16:
        for i in (2, 3): k(f"v_xor_b32 v{offW+i}, 32, v{offW+i}")
    k(f"s_lshl_b32 s{sM0X}, s{sW}, 12\ns_add_u32 s{sM0W}, s{sM0X}, 0x10000")
    rot = opt.get("a_rot", [3, 1])
    if rot:
        k(f"s_mul_i32 s{sT}, s{sRT}, {rot[0]}\ns_mul_i32 s{sT2}, s{sCT}, {rot[1]}\ns_add_u32 s{sT}, s{sT}, s{sT2}")
        k(f"s_mul_i32 s{sT2}, s{sT}, 6554\ns_lshr_b32 s{sT2}, s{sT2}, 16\ns_mul_i32 s{sT2}, s{sT2}, 10\ns_sub_u32 s{sT}, s{sT}, s{sT2}")
        k(f"s_lshl_b32 s{sKX}, s{sT}, 7\ns_mul_i32 s{sKW}, s{sT}, {64*3840}")
    else:
        k(f"s_mov_b32 s{sKX}, 0\ns_mov_b32 s{sKW}, 0")
    srd(k, 4, 36, 0, S*D*2); srd(k, 8, 38, 0, D*3*D*2)
    def dma_items(stage):
        sl = (stage % 4) * 16384
        it = [f"s_add_u32 m0, s{sM0X}, {sl}"]
        it += [(f"buffer_load_dwordx4 v{offX+i}, s[4:7], s{sKX} offen offset:{1024*i}{nt} lds", f"st{stage}") for i in range(4)]
        it += [f"s_add_u32 m0, s{sM0W}, {sl}"]
        it += [(f"buffer_load_dwordx4 v{offW+i}, s[8:11], s{sKW} offen offset:{1024*i}{nt} lds", f"st{stage}") for i in range(4)]
        adv = f"s_add_u32 s{sKX}, s{sKX}, 128\ns_add_u32 s{sKW}, s{sKW}, {64*3840}"
        if rot: adv += f"\ns_cmp_eq_u32 s{sKX}, 1280\ns_cselect_b32 s{sKX}, 0, s{sKX}\ns_cselect_b32 s{sKW}, 0, s{sKW}"
        it += [adv]
        return it
    k.run(dma_items(0))
    st(1)
    wt = opt.get("a_wt"); tX, tW, tA = V(), V(), V()
    if wt:
        k(f"""s_and_b32 s{sT}, s{sCT}, 7
        s_lshl3_add_u32 s{sT}, s{sRT}, s{sT}
        s_lshl2_add_u32 s{sT}, s{sT}, s{sW}
        s_mul_i32 s{sT}, s{sT}, {4*1280}
        v_and_b32 v{t0}, 3, v{vL}
        v_mul_u32_u24 v{t0}, 1280, v{t0}
        v_add_u32 v{tX}, s{sT}, v{t0}
        s_and_b32 s{sT}, s{sRT}, 3
        s_lshl2_add_u32 s{sT}, s{sT}, s{sW}
        s_mul_i32 s{sT}, s{sT}, {4*3840}
        s_lshl_b32 s{sT2}, s{sCT}, 8
        s_add_u32 s{sT}, s{sT}, s{sT2}
        v_bfe_u32 v{t0}, v{vL}, 1, 2
        v_mul_u32_u24 v{t0}, 3840, v{t0}
        v_and_b32 v{t2}, 1, v{vL}
        v_lshl_add_u32 v{t0}, v{t2}, 7, v{t0}
        v_add_u32 v{tW}, s{sT}, v{t0}""")
    def warm(pos):
        out = []
        for (ps, kind, lo, hi) in (wt or []):
            if ps != pos: continue
            if kind == "x": out.append(f"v_lshrrev_b32 v{tA}, 2, v{vL}\nv_min_u32 v{tA}, {hi-lo-1}, v{tA}\nv_lshl_add_u32 v{tA}, v{tA}, 7, v{tX}\nbuffer_load_dword v{vTD}, v{tA}, s[4:7], 0 offen offset:{128*lo}")
            else: out.append(f"v_lshrrev_b32 v{tA}, 3, v{vL}\nv_min_u32 v{tA}, {hi-lo-1}, v{tA}\nv_add_u32 v{tA}, {lo}, v{tA}\nv_mul_u32_u24 v{tA}, {64*3840}, v{tA}\nv_add_u32 v{tA}, v{tA}, v{tW}\nbuffer_load_dword v{vTD}, v{tA}, s[8:11], 0 offen")
        return out
    k.run(warm(0))
    late1 = opt.get('a_late1', 1)
    if a16:
        k(f"""s_cmp_ge_u32 s{sCT}, 10
        s_cselect_b32 s{sT}, 12, 0
        s_cselect_b32 s{sT2}, 0, 3
        v_lshrrev_b32 v{t0}, 1, v{vL}
        v_xor_b32 v{t0}, v{t0}, v{vL}
        v_bfe_i32 v{t2}, v{t0}, 2, 1
        v_bfe_i32 v{t0}, v{t0}, 0, 1
        v_and_b32 v{t2}, s{sT}, v{t2}
        v_xor_b32 v{tW}, v{t2}, v{vL}
        v_and_b32 v{t0}, s{sT2}, v{t0}
        v_xor_b32 v{tA}, v{t0}, v{vL}
        v_and_b32 v{t0}, 15, v{tW}
        v_lshrrev_b32 v{t2}, 1, v{t0}
        v_xor_b32 v{t2}, v{t2}, v{t1}
        s_and_b32 s{sT}, s{sW}, 1
        s_lshl_b32 s{sT2}, s{sT}, 2
        v_xor_b32 v{t2}, s{sT2}, v{t2}
        v_lshlrev_b32 v{t0}, 7, v{t0}
        v_lshl_add_u32 v{t0}, v{t2}, 4, v{t0}
        v_add_u32 v{adrX}, s{sM0X}, v{t0}
        v_xor_b32 v{adrX+1}, 64, v{adrX}
        v_bfe_u32 v{t0}, v{vL}, 2, 2
        v_lshl_add_u32 v{t2}, v{t1}, 3, v{t0}
        v_lshlrev_b32 v{t2}, 8, v{t2}
        v_lshl_add_u32 v{t2}, v{t0}, 6, v{t2}
        v_and_b32 v{t0}, 1, v{t1}
        v_lshl_add_u32 v{t2}, v{t0}, 5, v{t2}
        v_and_b32 v{t0}, 3, v{tA}
        v_lshl_add_u32 v{t2}, v{t0}, 3, v{t2}
        s_lshl_b32 s{sT}, s{sT}, 13
        s_add_u32 s{sT}, s{sT}, 0x10000
        v_add_u32 v{t2}, s{sT}, v{t2}
        v_lshrrev_b32 v{t3}, 5, v{vL}""")
        for j in range(2):
            for i in range(8): k(f"v_xor_b32 v{adrW+8*j+i}, {j*8192 + i*32}, v{t2}")
    else:
        k(f"""v_and_b32 v{t0}, 31, v{vL}
        v_lshrrev_b32 v{t2}, 1, v{t0}
        v_and_b32 v{t2}, 7, v{t2}
        v_lshrrev_b32 v{t3}, 5, v{vL}
        v_xor_b32 v{t2}, v{t2}, v{t3}
        s_lshl_b32 s{sT}, s{sW}, 1
        v_xor_b32 v{t2}, s{sT}, v{t2}
        v_lshlrev_b32 v{t0}, 7, v{t0}
        v_add_u32 v{t0}, s{sM0X}, v{t0}""")
        for j in range(4):
            k(f"v_xor_b32 v{adrX+j}, {2*j}, v{t2}\nv_lshl_add_u32 v{adrX+j}, v{adrX+j}, 4, v{t0}")
        if not late1: k.run(dma_items(1))
        k(f"""v_bfe_u32 v{t0}, v{vL}, 2, 2
        v_lshl_add_u32 v{t2}, v{t3}, 3, v{t0}
        v_lshlrev_b32 v{t2}, 8, v{t2}
        v_lshl_add_u32 v{t2}, v{t0}, 6, v{t2}
        v_and_b32 v{t0}, 1, v{t1}
        v_lshl_add_u32 v{t2}, v{t0}, 5, v{t2}
        v_and_b32 v{t0}, 3, v{vL}
        v_lshl_add_u32 v{t2}, v{t0}, 3, v{t2}
        v_add_u32 v{t2}, s{sM0W}, v{t2}""")
        for j in range(4):
            for i in range(4): k(f"v_xor_b32 v{adrW+4*j+i}, {j*4096 + i*64}, v{t2}")
    pro = opt.get('a_pro', 2)
    if pro > 2: k.run(dma_items(2))
    nb = opt.get('a_nb', 3); ah = nb - 1
    acc = V(64, 2); G = opt.get('a_grp', 1); sm = opt.get('a_sm', 0); nf = 4 if a16 else G + ah; fx = [V(4, 2) for _ in range(nf)]; fw = [V(16, 2) for _ in range(nb)]
    ones = V(4, 2); sx = V(4, 2); sq = V(4, 2); cs = V(16, 2); un = V(8 if sm in (1, 2) else 1, 2); msk = V()
    cp = V(16, 2); cw = V(16 if a16 else 8, 2); mu = V(4, 2); rr = V(2, 2); rt = cp; pk = fw[0]; adrE = V(); adrR = V(); offK = o16; offT = V(); offV = V(4); assert V.p <= vTD, V.p
    k(f"v_mov_b32 v{ones}, 0x3f803f80")
    for r in [sx, sx + 1, sq, sq + 1] + list(range(cs, cs+4)): k(f"v_mov_b32 v{r}, 0")
    if sm == 5: k(f"v_mov_b32 v{ones+1}, v{ones}")
    elif sm:
        k(f"v_bfe_u32 v{un}, v{vL}, 2, 2\nv_cmp_eq_u32 vcc, v{un}, v{t1}\nv_cndmask_b32 v{ones}, 0, v{ones}, vcc\nv_mov_b32 v{msk}, 0xffff0000")
        for r in range(1, 4): k(f"v_mov_b32 v{ones+r}, v{ones}")
    srd(k, 12, sWS, QKV, QKV_SZ); srd(k, 24, 24, 0, 256); srd(k, WR, WR, 0, S*F*2); srd(k, 20, 20, 0, S*F*2)
    srd(k, SYR, sWS, SY, SY_SZ)
    ls = opt.get("a_ls", [10, 21, 26]); sF0, sPX, sPW, sLX, sLW, sC0, sC1 = 40, 41, 44, 45, 101, 38, 39; vF0, o4, o8 = tX, tW, tA
    if ls:
        assert rot == [3, 1] and not sm and not wt
        srd(k, 16, sWS, PT, PT_SZ)
        k(f"""s_lshl2_add_u32 s{sLX}, s{sRT}, s{sW}
        s_mul_i32 s{sLX}, s{sLX}, 2560
        s_lshl_b32 s{sPX}, s{sCT}, 8
        s_add_u32 s{sPX}, s{sPX}, s{sLX}
        s_cmp_lt_u32 s{sCT}, 10
        s_cselect_b32 s{sPX}, s{sPX}, {OOB}
        s_mul_i32 s{sLW}, s{sCT}, 5120
        s_add_u32 s{sLW}, s{sLW}, {PT_W}
        s_lshl_b32 s{sPW}, s{sRT}, 9
        s_add_u32 s{sPW}, s{sPW}, s{sLW}
        s_lshl4_add_u32 s{sT}, s{sW}, s{sRT}
        s_cmp_lt_u32 s{sT}, 10
        s_cselect_b32 s{sPW}, s{sPW}, {OOB}
        s_lshl_b32 s{sT}, s{sW}, 9
        s_add_u32 s{sLW}, s{sLW}, s{sT}
        v_lshlrev_b32 v{o4}, 2, v{tW if a16 else vL}
        v_lshlrev_b32 v{o8}, 3, v{vL}
        v_min_u32 v{t0}, 19, v{vL}
        s_lshl_b32 s{sT}, s{sRT}, 4
        s_add_u32 s{sT}, s{sT}, {F0}
        v_add_u32 v{vF0}, s{sT}, v{t0}
        s_add_u32 s{sF0}, s{sT}, s{sCT}
        s_lshl_b32 s{sF0}, s{sF0}, 7
        s_add_u32 s{sT}, s{sCT}, {F0 - 160}
        v_lshl_add_u32 v{t2}, v{t0}, 4, s{sT}
        v_cmp_gt_u32 vcc, 10, v{t0}
        v_cndmask_b32 v{vF0}, v{t2}, v{vF0}, vcc
        v_lshlrev_b32 v{vF0}, 7, v{vF0}
        s_cmp_eq_u32 s{sW}, 0
        s_cselect_b32 s{sF0}, s{sF0}, {OOB}
        s_cselect_b32 s{sC0}, 0, {OOB}
        s_cselect_b32 s{sC1}, 16, 0""")
    c.maps(sT, sT2)
    c.touch_setup(vPF, sT)
    if pro > 3: k.run(dma_items(3))
    k(f"""v_add_u32 v{adrE}, 0x20000, v{offK}
    v_and_b32 v{t0}, 31, v{vL}
    v_lshl_add_u32 v{offV}, v{t3}, 30, v{offK}
    v_mul_u32_u24 v{offT}, {HS}, v{t3}
    v_lshl_add_u32 v{offT}, v{t0}, 3, v{offT}
    s_lshl2_add_u32 s{sBM}, s{sRT}, s{sW}
    s_lshl4_add_u32 s{sFl}, s{sRT}, s{sCT}
    s_lshl_b32 s{sFl}, s{sFl}, 7
    s_cmp_eq_u32 s{sW}, 0
    s_cselect_b32 s{sFl}, s{sFl}, {OOB}
    """)
    c.b_early(t2)
    c.x('a0')
    if late1:
        if late1 == 1: k("s_barrier")
        k.run(dma_items(1))
    k.run(warm(1))
    c.x('a1')
    k(f"s_cmp_ge_u32 s{sCT}, 10\ns_cbranch_scc1 A_v")
    snap1 = k.snapshot()

    def reads(n):
        s_, j = divmod(n, 4); sl = (s_ % 4) * 16384; b = n % nb
        it = [f"ds_read_b128 {v(fx[n % nf],4)}, v{adrX+j} offset:{sl}"]
        for i in range(4):
            for u in range(2):
                it.append(f"ds_read_b64_tr_b16 {v(fw[b]+4*i+2*u,2)}, v{adrW+4*j+i} offset:{sl + u*1024}")
        return it
    def stats(n):
        b = n % nb; it = []
        if opt.get("a_nostats") or sm == 5 or ls and n > 3: return it
        if sm in (1, 2):
            for r in range(4):
                it += [f"v_lshlrev_b32 v{un+2*r}, 16, v{fx[n % nf]+r}", f"v_and_b32 v{un+2*r+1}, v{msk}, v{fx[n % nf]+r}"]
            for r in range(4):
                if sm == 1: it += [f"v_pk_fma_f32 {v(sq,2)}, {v(un+2*r,2)}, {v(un+2*r,2)}, {v(sq,2)}"]
                else: it += [f"v_fmac_f32 v{sq}, v{un+2*r}, v{un+2*r}", f"v_fmac_f32 v{sq+1}, v{un+2*r+1}, v{un+2*r+1}"]
            if sm == 1: it = it[:4] + [it[8]] + it[4:6] + [it[9]] + it[6:8] + it[10:]
            return it
        ms = range(max(n - G + 1, 0), n + 1) if n % G == 0 else range(n - n % G + 1, 40) if n == 39 else []
        for m in ms:
            for r in range(4):
                if not sm: it.append(f"v_dot2_f32_bf16 v{sx}, v{fx[m % nf]+r}, v{ones}, v{sx}")
                z = sq + (r % 2 if sm else 0)
                it.append(f"v_dot2_f32_bf16 v{z}, v{fx[m % nf]+r}, v{fx[m % nf]+r}, v{z}")
        if n % 4 == 0 and not sm:
            for r in range(4):
                for i in range(4): it.append(f"v_dot2_f32_bf16 v{cs+i}, v{fw[b]+4*i+r}, v{ones}, v{cs+i}")
        return it
    def main(vmode):
        def mm(i, xw, ww, c, op="v_mfma_f32_32x32x16_bf16"):
            a_, b_ = (xw, ww) if vmode else (ww, xw)
            return f"{op} {v(acc+16*i,16)}, {a_}, {b_}, {c}"
        c.x("a2"); k.wait_tag("st0"); c.x("a3"); k("s_barrier"); st(2)
        for n in range(ah): k.run(reads(n))
        def again(name, cmp_, load):
            name += str(int(vmode))
            k(f"{cmp_}\ns_cbranch_vccz {name}x"); sn = k.snapshot()
            k(f"s_mov_b32 s{sT}, 0x40000\n{name}:\n{load}\ns_sub_u32 s{sT}, s{sT}, 1\n{cmp_}\ns_cbranch_scc1 {name}x\ns_cbranch_vccnz {name}\n{name}x:")
            k.restore(sn)
        ldC = f"buffer_load_dword v{vD}, off, s[24:27], s{sC0} offset:128 sc1"
        ldF = f"buffer_load_dword v{vD}, v{vF0}, s[{SYR}:{SYR+3}], 0 offen sc1"
        px = [cs + 4 + i for i in range(10)]; pw = [cp + 2 * i for i in range(8)] + [cw, cw + 2]
        todo = []
        pend = []
        for s_ in range(pro, 4): pend += dma_items(s_) + warm(s_)
        for n in range(40):
            s_, j = divmod(n, 4); b = n % nb
            if j == 4 - ah and s_ < 9:
                assert not any(isinstance(x, tuple) and x[1] == f"st{s_+1}" for x in pend)
                k.wait_all(vm=False); k.wait_tag(f"st{s_+1}", *(["pt"] if ls and n == ls[0] else [])); k("s_barrier")
                if s_ + 4 < 10 and not opt.get("a_nodma"): pend += dma_items(s_ + 4)
            c.x(f'an{n}')
            if n == 38:
                k.wait_all(vm=False); k("s_barrier")
            mf = [mm(i, v(fx[n % nf],4), v(fw[b]+4*i,4), v(acc+16*i,16) if n else "0") for i in range(4)]
            if opt.get("a_m16"):
                mf = [f"v_mfma_f32_16x16x32_bf16 {v(acc+16*i+8*(n%2)+4*z,4)}, {v(fw[b]+4*i,4)}, {v(fx[(n + (z if opt['a_m16'] > 1 and n < 39 else 0)) % nf],4)}, {v(acc+16*i+8*(n%2)+4*z,4) if n > 1 else 0}" for i in range(4) for z in range(2)]
                if opt["a_m16"] == 3: mf = mf[0::2] + mf[1::2]
                if sm == 5 or n == 39: mf = [mf[2*i] + "\n" + mf[2*i+1] for i in range(4)]
            if sm == 5:
                M4 = lambda d, x, y, first: f"v_mfma_f32_4x4x4_16b_bf16 {v(d,4)}, {v(x,2)}, {v(y,2)}, {'0' if first else v(d,4)}"
                X = fx[n % nf]
                ex4 = [[M4(sq, X, X, n == 0)], [M4(sx, ones, X, n == 0)], [M4(sq, X + 2, X + 2, False)], [M4(sx, ones, X + 2, False)]]
                for i in (range(4) if n == 36 else [] if n > 36 else [n % 4]):
                    ex4[i % 2].append(M4(cs+4*i, ones, fw[b]+4*i, n < 4)); ex4[i % 2 + 2].append(M4(cs+4*i, ones, fw[b]+4*i+2, False))
                if n == 39: mf = [x[0] for x in ex4] + mf
                else: mf = ["\n".join(ex4[i] + [mf[i]]) for i in range(4)]
            elif sm and not opt.get("a_nostats"):
                M16 = lambda d, x, first: f"v_mfma_f32_16x16x32_bf16 {v(d,4)}, {v(ones,4)}, {v(x,4)}, {'0' if first else v(d,4)}"
                if n % 4 == 0: mf = [x for i in range(4) for x in (mf[i], M16(cs+4*i, fw[b]+4*i, n == 0))]
                mf = [M16(sx, fx[n % nf], n == 0)] + mf if sm != 4 or n == 39 else mf + [M16(sx, fx[n % nf], n == 0)]
            fill = reads(n + ah) if n + ah < 40 else []
            if opt.get("a_nord") and n > 3: fill = fill[:opt["a_nord"] - 1]
            take = opt.get('a_take', 4) if len(pend) > 11 or j != 3 - ah else 99
            opt.setdefault("a_tk", "3333222233223322332233223333")
            if opt.get("a_tk"):
                cnt = int((opt["a_tk"] + "9" * 40)[n]); take = 0
                while take < len(pend) and (cnt or not isinstance(pend[take], tuple) and "m0" not in pend[take]):
                    cnt -= isinstance(pend[take], tuple); take += 1
                if take and take == len(pend) and n >= 22 and opt.get("v"): print("last transfer at step", n)
            fill = interleave(fill, pend[:take]) if fill else pend[:take]
            pend = pend[take:]
            sts = stats(n)
            if ls:
                if n == 1: fill += [f"v_permlane32_swap_b32 v{cs}, v{cs+1}", f"v_permlane32_swap_b32 v{cs+2}, v{cs+3}", f"s_lshl_b32 s{sT}, s{sW}, 10\nv_add_u32 v{msk}, s{sT}, v{adrE}",
                                    f"v_add_f32 v{cs}, v{cs}, v{cs+1}", f"v_add_f32 v{cs+1}, v{cs+2}, v{cs+3}", f"ds_write_b64 v{msk}, {v(cs,2)}"]
                if n == 2: fill = [f"ds_read_b64 {v(cp+2*w,2)}, v{adrE} offset:{1024*w}" for w in range(4)] + fill
                if n == 3:
                    fill = [f"v_add_f32 v{cp+i}, v{cp+i}, v{cp+4+i}" for i in range(4)] + [f"v_add_f32 v{cp+i}, v{cp+i}, v{cp+2+i}" for i in range(2)] + \
                           [(f"buffer_store_dwordx2 {v(cp,2)}, v{o8}, s[16:19], s{sPW} offen sc1", "pt")] + fill
                if n == 4: fill = [f"v_permlane32_swap_b32 v{sx}, v{sq}", fill[0], f"v_add_f32 v{sx}, v{sx}, v{sq}", (f"buffer_store_dword v{sx}, v{o4}, s[16:19], s{sPX} offen sc1", "pt")] + fill[1:]
                if n == opt.get("a_lc", 6): fill = [ldC] + fill
                if n == ls[0]:
                    fill = [lambda: again("A_c", f"v_cmp_gt_u32 vcc, s{sC1}, v{vD}", ldC), f"s_mov_b64 exec, 1\nbuffer_store_dword v{vP}, off, s[{SYR}:{SYR+3}], s{sF0} sc1\ns_mov_b64 exec, -1"] + fill
                if n == ls[1]: assert n >= ls[0] + 4; fill = [ldF] + fill
                if n == ls[2]:
                    fill = [lambda: again("A_f", f"v_cmp_ne_u32 vcc, v{vP}, v{vD}", ldF)] + fill
                    todo += [f"buffer_load_dwordx2 {v(cp+2*i,2)}, v{o8}, s[16:19], s{sLW} offen offset:{2048*i} sc1" for i in range(2)]
                    todo += [f"s_add_u32 s{sLW}, s{sLW}, 4096\ns_cmp_lt_u32 s{sW}, 2\ns_cselect_b32 s{sLW}, s{sLW}, {OOB}\nbuffer_load_dwordx2 {v(cp+4,2)}, v{o8}, s[16:19], s{sLW} offen sc1"]
                    todo += [f"buffer_load_dword v{px[i]}, v{o4}, s[16:19], s{sLX} offen offset:{256*i} sc1" for i in range(10)]
                if n == 36:
                    assert not todo
                    todo += [f"v_add_f32 v{cp+e}, v{cp+e}, v{cp+2+e}" for e in range(2)] + [f"v_add_f32 v{cs+e}, v{cp+e}, v{cp+4+e}" for e in range(2)]
                    for g in (5, 2, 1, 0):
                        todo += [f"v_add_f32 v{px[i] if g else sx}, v{px[i]}, v{px[i+g if g else 4]}" for i in range(max(g, 1))]
                tk = opt.get("a_lt", 7)
                if todo: fill = fill[:1] + interleave(fill[1:], todo[:tk]); todo = todo[tk:]
            tl = opt.get("tlb")
            if tl and n == tl[0]:
                fill = fill + [f"s_mov_b32 s14, {hex(tl[3])}\ns_mov_b32 s100, {hex(tl[2])}\nv_lshlrev_b32 v{un}, {tl[1]}, v0\nv_add_u32 v{un}, s100, v{un}\nbuffer_load_dword v{vTD}, v{un}, s[12:15], 0 offen\ns_mov_b32 s14, {hex(QKV_SZ)}"]
            if n in ta: fill = fill + [c.touch(ta.index(n), vPF, vTD, 100)]
            if n == 36: fill = fill + [f"buffer_load_dword v{vD}, off, s[24:27], 0 sc1"]
            if n == 37:
                if sm: fill += [f"v_mov_b32 v{cs+i}, v{cs+4*i}" for i in range(1, 4)]
                assert not todo
                fill += [f"ds_write_b64 v{msk}, {v(cs,2)}"] if ls else [f"s_lshl_b32 s{sT}, s{sW}, 10", f"v_add_u32 v{t0}, s{sT}, v{adrE}", f"ds_write_b128 v{t0}, {v(cs,4)}"]
            if ls and n == 38:
                fill += [f"ds_read_b64 {v(cp+2*w,2)}, v{adrE} offset:{1024*w}" for w in range(4)]
                fill += [f"v_mov_b32 v{sq}, v{sx}", f"s_mov_b32 vcc_lo, -1\ns_mov_b32 vcc_hi, 0", f"v_permlane32_swap_b32 v{sx}, v{sq}",
                        f"v_mul_f32 v{sx}, {f32(-1/640)}, v{sx}", f"v_mul_f32 v{sq}, {f32(1/640)}, v{sq}",
                        f"v_cvt_pk_bf16_f32 v{mu}, v{sx}, v{sx}", f"v_fma_f32 v{sq}, -v{sx}, v{sx}, v{sq}",
                        f"v_and_b32 v{sx+1}, 0xffff0000, v{mu}", f"v_max_f32 v{sq}, 0, v{sq}",
                        f"v_sub_f32 v{sx}, v{sx}, v{sx+1}", f"v_add_f32 v{sq}, {f32(1e-5)}, v{sq}",
                        f"v_cvt_pk_bf16_f32 v{mu+1}, v{sx}, v{sx}", f"v_rsq_f32 v{rr}, v{sq}"]
            elif n == 38:
                fill += [f"ds_read_b128 {v(cp+4*w,4)}, v{adrE} offset:{1024*w}" for w in range(4)]
            if ls and n == 39:
                for i in range(4): fill += [f"v_add_f32 v{cp+i}, v{cp+i}, v{cp+4+i}"]
                for i in range(2): fill += [f"v_add_f32 v{cp+i}, v{cp+i}, v{cp+2+i}"]
                for i in range(2): fill += [f"v_cvt_pk_bf16_f32 v{cp+4+i}, v{cp+i}, v{cp+i}"]
                for i in range(2): fill += [f"v_and_b32 v{cp+4+i}, 0xffff0000, v{cp+4+i}"]
                for i in range(2): fill += [f"v_sub_f32 v{cp+i}, v{cp+i}, v{cp+4+i}"]
                for i in range(2): fill += [f"v_cvt_pk_bf16_f32 v{cp+i}, v{cp+4+i}, v{cp+i}"]
                for i in range(4):
                    fill += [f"v_cndmask_b32_e64 v{cw+2*i+e}, v{cp+i//2}, 0, vcc" if i % 2 else f"v_cndmask_b32 v{cw+2*i+e}, 0, v{cp+i//2}, vcc" for e in range(2)]
                k.run(interleave(mf, fill))
            elif n == 39:
                for i in range(4):
                    fill += [f"v_add_f32 v{cp+i}, v{cp+i}, v{cp+4+i}", f"v_add_f32 v{cp+8+i}, v{cp+8+i}, v{cp+12+i}"]
                for i in range(4): fill += [f"v_add_f32 v{cp+i}, v{cp+i}, v{cp+8+i}"]
                for i in range(4): fill += [f"v_cvt_pk_bf16_f32 v{cp+4+i}, v{cp+i}, v{cp+i}"]
                for i in range(4): fill += [f"v_and_b32 v{cp+4+i}, 0xffff0000, v{cp+4+i}"]
                for i in range(4): fill += [f"v_sub_f32 v{cp+i}, v{cp+i}, v{cp+4+i}"]
                for i in range(4): fill += [f"v_cvt_pk_bf16_f32 v{cw+2*i}, v{cp+4+i}, v{cp+i}", f"v_cvt_pk_bf16_f32 v{cw+2*i+1}, v{cp+4+i}, v{cp+i}"]
                if sm == 5:
                    k.run(mf[:5]); mf = mf[5:]
                    for r in (1, 2, 3):
                        m_ = hex(0x11111111 << r)
                        k(f"s_mov_b32 vcc_lo, {m_}\ns_mov_b32 vcc_hi, {m_}\nv_cndmask_b32 v{sq}, v{sq}, v{sq+r}, vcc")
                elif sm: k.run(mf[:2] + sts + [f"v_add_f32 v{sq}, v{sq}, v{sq+1}"]); mf = mf[2:]
                else: k.run(sts)
                fin = []
                fin += [f"v_mov_b32 v{sx+1}, v{sx}", f"v_mov_b32 v{sq+1}, v{sq}",
                        f"v_permlane32_swap_b32 v{sx}, v{sx+1}", f"v_permlane32_swap_b32 v{sq}, v{sq+1}",
                        f"v_add_f32 v{sx}, v{sx}, v{sx+1}", f"v_add_f32 v{sq}, v{sq}, v{sq+1}",
                        f"v_mul_f32 v{sx}, {f32(-1/640)}, v{sx}", f"v_mul_f32 v{sq}, {f32(1/640)}, v{sq}",
                        f"v_cvt_pk_bf16_f32 v{mu}, v{sx}, v{sx}",
                        f"v_fma_f32 v{sq}, -v{sx}, v{sx}, v{sq}",
                        f"v_and_b32 v{sx+1}, 0xffff0000, v{mu}",
                        f"v_max_f32 v{sq}, 0, v{sq}",
                        f"v_sub_f32 v{sx}, v{sx}, v{sx+1}",
                        f"v_add_f32 v{sq}, {f32(1e-5)}, v{sq}",
                        f"v_cvt_pk_bf16_f32 v{mu+1}, v{sx}, v{sx}",
                        f"v_rsq_f32 v{rr}, v{sq}"]
                k.run(interleave(mf, fill[:12] + fin + fill[12:], per=7))
            elif opt.get("a_mix", 0) or sm in (1, 2):
                k.run(interleave(mf, interleave(fill, sts) if len(fill) >= len(sts) else interleave(sts, fill)))
            else:
                k.run(interleave(mf, fill) + sts)
        st(3)
        ex = [mm(i, v(mu,2), v(cw+2*i,2), v(acc+16*i,16), "v_mfma_f32_32x32x8_bf16") for i in range(4)]
        return ex

    def main16(vmode):
        T = lambda t8, u: acc + (16 * (t8 >> 1) + 8 * u + 4 * (t8 & 1) if vmode else 8 * t8 + 4 * u)
        def mm(t8, u, xw, ww, first=False, op="v_mfma_f32_16x16x32_bf16"):
            a_, b_ = (xw, ww) if vmode else (ww, xw)
            return f"{op} {v(T(t8,u),4)}, {a_}, {b_}, {0 if first else v(T(t8,u),4)}"
        X = lambda n, u: fx[n & 2 | u]
        def rd(n):
            sl = (n // 4 % 4) * 16384; j2 = n >> 1 & 1
            it = [f"ds_read_b64_tr_b16 {v(fw[n % nb]+4*i+2*u,2)}, v{adrW+8*j2+4*(n&1)+i} offset:{sl + u*1024}" for i in range(4) for u in range(2)]
            if n % 2 == 0: it = [f"ds_read_b128 {v(X(n,u),4)}, v{adrX+j2} offset:{sl + 2048*u}" for u in range(2)] + it
            return it
        def fold(r):
            return [f"v_permlane16_swap_b32 v{r[0]}, v{r[1]}", f"v_permlane16_swap_b32 v{r[2]}, v{r[3]}", f"v_add_f32 v{r[0]}, v{r[0]}, v{r[1]}", f"v_add_f32 v{r[2]}, v{r[2]}, v{r[3]}",
                    f"v_permlane32_swap_b32 v{r[0]}, v{r[2]}", f"v_add_f32 v{r[0]}, v{r[0]}, v{r[2]}"]
        def again(name, cmp_, load):
            name += str(int(vmode))
            k(f"{cmp_}\ns_cbranch_vccz {name}x"); sn = k.snapshot()
            k(f"s_mov_b32 s{sT}, 0x40000\n{name}:\n{load}\ns_sub_u32 s{sT}, s{sT}, 1\n{cmp_}\ns_cbranch_scc1 {name}x\ns_cbranch_vccnz {name}\n{name}x:")
            k.restore(sn)
        ldC = f"buffer_load_dword v{vD}, off, s[24:27], s{sC0} offset:128 sc1"
        ldF = f"buffer_load_dword v{vD}, v{vF0}, s[{SYR}:{SYR+3}], 0 offen sc1"
        px = [cs + 4 + i for i in range(10)]; nE = opt.get("a_le", 34); tkp = opt.get("a_tk", "3333222233223322332233223333")
        k.wait_tag("st0"); k("s_barrier"); st(2)
        for n in range(2): k.run(rd(n))
        pend, todo, ex = [], [], []
        for s_ in range(pro, 4): pend += dma_items(s_)
        for n in range(40):
            s_, j = divmod(n, 4); b = n % nb
            if j == 2 and (s_ < 9 or n == nE):
                assert not any(isinstance(x, tuple) and x[1] == f"st{s_+1}" for x in pend)
                k.wait_all(vm=False); k.wait_tag(f"st{s_+1}", *(["pt"] if n == ls[0] else [])); k("s_barrier")
                if s_ + 4 < 10: pend += dma_items(s_ + 4)
            c.x(f'an{n}')
            mf = [mm(4*(n&1)+i, u, v(X(n,u),4), v(fw[b]+4*i,4), n < 2) for i in range(4) for u in range(2)]
            fill = rd(n + 2) if n < 38 else []
            cnt = int((tkp + "9" * 40)[n]); take = 0
            while take < len(pend) and (cnt or not isinstance(pend[take], tuple) and "m0" not in pend[take]):
                cnt -= isinstance(pend[take], tuple); take += 1
            fill = interleave(fill, pend[:take]) if fill else pend[:take]
            pend = pend[take:]
            if n == 2: fill = [f"ds_read_b32 v{cp+2*(w&1)+(w>>1)}, v{adrE} offset:{1024*w}" for w in range(4)] + fill
            if n == 3: fill = [f"v_add_f32 v{cp+i}, v{cp+i}, v{cp+2+i}" for i in range(2)] + [(f"buffer_store_dwordx2 {v(cp,2)}, v{o8}, s[16:19], s{sPW} offen sc1", "pt")] + fill
            if n == 4: fill = interleave(fill[:6], fold([sx, sx + 1, sq, sq + 1])) + [(f"buffer_store_dword v{sx}, v{o4}, s[16:19], s{sPX} offen sc1", "pt")] + fill[6:]
            if n == opt.get("a_lc", 6): fill = [ldC] + fill
            if n == ls[0]:
                fill = [lambda: again("A_c", f"v_cmp_gt_u32 vcc, s{sC1}, v{vD}", ldC), f"s_mov_b64 exec, 1\nbuffer_store_dword v{vP}, off, s[{SYR}:{SYR+3}], s{sF0} sc1\ns_mov_b64 exec, -1"] + fill
            if n == ls[1]: assert n >= ls[0] + 4; fill = [ldF] + fill
            if n == ls[2]:
                fill = [lambda: again("A_f", f"v_cmp_ne_u32 vcc, v{vP}, v{vD}", ldF)] + fill
                todo += [f"buffer_load_dwordx2 {v(cp+2*i,2)}, v{o8}, s[16:19], s{sLW} offen offset:{2048*i} sc1" for i in range(2)]
                todo += [f"s_add_u32 s{sLW}, s{sLW}, 4096\ns_cmp_lt_u32 s{sW}, 2\ns_cselect_b32 s{sLW}, s{sLW}, {OOB}\nbuffer_load_dwordx2 {v(cp+4,2)}, v{o8}, s[16:19], s{sLW} offen sc1"]
                todo += [f"buffer_load_dword v{px[i]}, v{o4}, s[16:19], s{sLX} offen offset:{256*i} sc1" for i in range(10)]
            if n == nE - 1:
                assert not todo
                todo += [f"v_add_f32 v{cp+e}, v{cp+e}, v{cp+2+e}" for e in range(2)] + [f"v_add_f32 v{cs+e}, v{cp+e}, v{cp+4+e}" for e in range(2)] + [f"ds_write_b64 v{msk}, {v(cs,2)}"]
            if n == nE:
                assert not todo
                todo += [f"ds_read_b64 {v(cp+2*w,2)}, v{adrE} offset:{1024*w}" for w in range(4)]
                for g in (5, 2, 1, 0): todo += [f"v_add_f32 v{px[i] if g else sx}, v{px[i]}, v{px[i+g if g else 4]}" for i in range(max(g, 1))]
                tx = [f"v_mov_b32 v{sq}, v{sx}", f"v_permlane32_swap_b32 v{sx}, v{sq}",
                      f"v_mul_f32 v{sx}, {f32(-1/640)}, v{sx}", f"v_mul_f32 v{sq}, {f32(1/640)}, v{sq}",
                      f"v_cvt_pk_bf16_f32 v{mu}, v{sx}, v{sx}", f"v_fma_f32 v{sq}, -v{sx}, v{sx}, v{sq}",
                      f"v_and_b32 v{sx+1}, 0xffff0000, v{mu}", f"v_max_f32 v{sq}, 0, v{sq}",
                      f"v_sub_f32 v{sx}, v{sx}, v{sx+1}", f"v_add_f32 v{sq}, {f32(1e-5)}, v{sq}",
                      f"v_cvt_pk_bf16_f32 v{mu+1}, v{sx}, v{sx}", f"v_rsq_f32 v{rr}, v{sq}",
                      f"v_mov_b32 v{mu+2}, v{mu}", f"v_mov_b32 v{mu+3}, v{mu+1}", f"v_permlane16_swap_b32 v{mu}, v{mu+2}", f"v_permlane16_swap_b32 v{mu+1}, v{mu+3}"]
                tw = [f"v_add_f32 v{cp+i}, v{cp+i}, v{cp+4+i}" for i in range(4)] + [f"v_add_f32 v{cp+i}, v{cp+i}, v{cp+2+i}" for i in range(2)]
                for x in (f"v_cvt_pk_bf16_f32 v%4, v%0, v%0", "v_and_b32 v%4, 0xffff0000, v%4", "v_sub_f32 v%0, v%0, v%4", "v_cvt_pk_bf16_f32 v%0, v%4, v%0"):
                    tw += [x.replace("%4", str(cp+4+i)).replace("%0", str(cp+i)) for i in range(2)]
                todo += interleave(tx, tw)
                if vmode: todo += [f"ds_write_b32 v{adrR}, v{rr}"]
                else: todo += [f"v_mul_f32 v{rr}, s{sSC}, v{rr}", f"v_mov_b32 v{rr+1}, v{rr}", f"v_permlane16_swap_b32 v{rr}, v{rr+1}"]
                for g in range(4):
                    todo += [f"s_mov_b32 vcc_lo, {hex(0xffff << 16*g & 0xffffffff)}\ns_mov_b32 vcc_hi, {hex(0xffff << 16*g >> 32)}\n" + "\n".join(f"v_cndmask_b32 v{cw+8*h+2*g+e}, 0, v{cp+h}, vcc" for h in range(2) for e in range(2))]
                    todo += [("ex", g)]
                if vmode: todo += [f"ds_read_b128 {v(rt+8+4*t,4)}, v{offT} offset:{64*t}" for t in range(2)]
            tk = opt.get("a_lt", 7) if n < nE else 99 if n == 39 else opt.get("a_l2", 14)
            now, todo = todo[:tk], todo[tk:]
            mf += ex; ex = []
            for x in [x for x in now if x[0] == "ex"]:
                ex += [mm(4*h+x[1], u, v(mu+2*u,2), v(cw+8*h+2*x[1],2), op="v_mfma_f32_16x16x16_bf16") for h in range(2) for u in range(2)]
            now = [x for x in now if x[0] != "ex"]
            fill = fill[:1] + interleave(fill[1:], now) if len(fill) > 1 else fill + now
            if n in ta: fill = fill + [c.touch(ta.index(n), vPF, vTD, 100)]
            if n == 36: fill = fill + [f"buffer_load_dword v{vD}, off, s[24:27], 0 sc1"]
            k.run(interleave(mf, fill))
            if n < 4:
                for r in range(4): k(f"v_dot2_f32_bf16 v{sx+n%2}, v{X(n,n%2)+r}, v{ones}, v{sx+n%2}\nv_dot2_f32_bf16 v{sq+n%2}, v{X(n,n%2)+r}, v{X(n,n%2)+r}, v{sq+n%2}")
            if n < 2:
                k(f"s_cmp_ge_u32 s{sW}, 2\ns_cbranch_scc{1-n} A_s{n}{int(vmode)}")
                for r in range(4):
                    for i in range(4): k(f"v_dot2_f32_bf16 v{cs+i}, v{fw[b]+4*i+r}, v{ones}, v{cs+i}")
                k.label(f"A_s{n}{int(vmode)}")
            if n == 1: k.run([f"s_lshl_b32 s{sT}, s{sW}, 10\nv_add_u32 v{msk}, s{sT}, v{adrE}"] + fold([cs, cs + 1, cs + 2, cs + 3]) + [f"ds_write_b32 v{msk}, v{cs}"])
        st(3)
        return ex
    if a16:
        assert ls and nb == 3
        k(f"s_cmp_ge_u32 s{sCT}, 5\ns_cselect_b32 s{sSC}, 1.0, {f32(math.log2(math.e) / math.sqrt(20))}")
    ex = (main16 if a16 else main)(False)
    k(f"""s_cmp_ge_u32 s{sCT}, 5
    s_cselect_b32 s{sSC}, 1.0, {f32(math.log2(math.e) / math.sqrt(20))}
    s_cselect_b32 s{sT}, 5, 0
    s_cselect_b32 s{sT2}, 64, 0""")
    k(f"""s_sub_u32 s{sCT}, s{sCT}, s{sT}
    s_add_u32 s{sBM}, s{sBM}, s{sT2}
    s_lshl_b32 s{sBT}, s{sBM}, 8
    s_add_u32 s{sBT}, s{sBT}, {R_QT}
    s_lshl_b32 s{sBM}, s{sBM}, 10""")
    k.run(ex[:1])
    if not a16: k(f"v_mul_f32 v{rr}, s{sSC}, v{rr}")
    k.run(ex[1:2])
    for cc in range(1, 5): k(f"s_cmp_eq_u32 s{sCT}, {cc}\ns_cbranch_scc1 A_qk{cc}")
    snap2 = k.snapshot()
    for cc in range(5):
        k.restore(snap2)
        if cc: k.label(f"A_qk{cc}")
        items = [(e, -1) for e in ex[2:]]
        done = set()
        def cv(i, to=pk):
            if a16:
                if i // 2 not in done:
                    for p in range(i // 2 * 4, i // 2 * 4 + 4):
                        items.append((f"v_pk_mul_f32 {v(acc+2*p,2)}, {v(acc+2*p,2)}, {v(rr,2)} " + ("op_sel:[0,1] op_sel_hi:[1,1]" if p & 2 else "op_sel_hi:[1,0]"), p))
                        items.append((f"v_cvt_pk_bf16_f32 v{pk+p}, v{acc+2*p}, v{acc+2*p+1}", p))
                    for e in range(2): items.append((f"v_permlane16_swap_b32 v{pk+i//2*4+e}, v{pk+i//2*4+2+e}", -1))
                    done.add(i // 2)
                if to != pk: items.extend((f"v_mov_b32 v{to+p}, v{pk+p}", -1) for p in (2*i, 2*i+1))
                return
            for p in (2*i, 2*i+1):
                items.append((f"v_pk_mul_f32 {v(acc+2*p,2)}, {v(acc+2*p,2)}, {v(rr,2)} op_sel_hi:[1,0]", p))
                items.append((f"v_cvt_pk_bf16_f32 v{to+p}, v{acc+2*p}, v{acc+2*p+1}", p))
        i = 0
        while i < 16:
            I = 16 * cc + i; m = I % 5; he = 2 * (I // 5)
            split = m != 2 and not (m in (0, 3) and i < 15)
            cv(i, cp - 2*i if split else pk)
            if m == 2:
                items.append((f"s_add_u32 s{sT}, s{sBT}, {he*HS}\nbuffer_store_dwordx2 {v(pk+2*i,2)}, v{offT}, s[12:15], s{sT} offen {qf}", -1)); i += 1; continue
            ad = f"s_add_u32 s{sT}, s{sBM}, {(he + (m > 2))*HS}\n"
            if m in (0, 3) and i < 15:
                cv(i + 1)
                items.append((ad + f"buffer_store_dwordx4 {v(pk+2*i,4)}, v{offK}, s[12:15], s{sT} offen {qf}", -1)); i += 2
            else:
                items += [(f"v_permlane32_swap_b32 v{cp}, v{cp+2}", -1), (f"v_permlane32_swap_b32 v{cp+1}, v{cp+3}", -1)]
                items.append((ad + f"buffer_store_dwordx4 {v(cp,4)}, v{offV}, s[12:15], s{sT} offen offset:{0 if m in (0,3) else 512} {qf}", -1)); i += 1
        k.run(schedule(items))
        k("s_branch A_done")
    k.restore(snap1)
    k.label("A_v")
    k(f"""s_sub_u32 s{sT}, s{sCT}, 10
    s_lshl_b32 s{sT}, s{sT}, 7
    v_mul_u32_u24 v{t2}, 320, v{t3}
    s_lshl_b32 s{sT2}, s{sW}, 7
    s_add_u32 s{sT2}, s{sT2}, {0x20000+4096}
    v_lshl_add_u32 v{adrR}, v{t0}, 2, s{sT2}
    v_lshl_add_u32 v{offT}, v{t1 if a16 else t3}, 4, s{sT2}
    v_add_u32 v{t0}, s{sT}, v{t0}
    s_mul_i32 s{sBM}, s{sBM}, 1280
    s_add_u32 s{sBM}, s{sBM}, {R_V}""")
    for i in range(4):
        k(f"""v_add_u32 v{t1}, {32*i}, v{t0}
        v_mul_u32_u24 v{t3}, 3277, v{t1}
        v_lshrrev_b32 v{t3}, 16, v{t3}
        v_mul_u32_u24 v{offV+i}, {HS - 320}, v{t3}
        v_lshl_add_u32 v{offV+i}, v{t1}, 4, v{offV+i}
        v_add_u32 v{offV+i}, v{offV+i}, v{t2}""")
    if a16: k.run(main16(True))
    else:
        ex = main(True)
        k(f"ds_write_b32 v{adrR}, v{rr}")
        k.run(ex[:1])
        k.wait_all(vm=False)
        for q in range(4): k(f"ds_read_b128 {v(rt+4*q,4)}, v{offT} offset:{32*q}")
        k.run(ex[1:])
    for i in range(4):
        for p in range(8):
            k(f"v_pk_mul_f32 {v(acc+16*i+2*p,2)}, {v(acc+16*i+2*p,2)}, {v(rt+8+4*(p//4)+2*(p%2) if a16 else rt+2*p,2)}")
        for p in range(8):
            k(f"v_cvt_pk_bf16_f32 v{pk+8*i+p}, v{acc+16*i+2*p}, v{acc+16*i+2*p+1}")
            if p % 4 == 3:
                if a16: k(f"v_permlane16_swap_b32 v{pk+8*i+p-3}, v{pk+8*i+p-1}\nv_permlane16_swap_b32 v{pk+8*i+p-2}, v{pk+8*i+p}")
                k(f"buffer_store_dwordx4 {v(pk+8*i+p-3,4)}, v{offV+i}, s[12:15], s{sBM} offen offset:{640*(p//4)} {qf}")
    k("s_branch A_done")
    k.restore(snap0)
    k.label("A_prep")
    sP = sRT
    k(f"s_sub_u32 s{sT2}, s{sJ}, 30\ns_lshl1_add_u32 s{sP}, s{sXC}, s{sT2}")
    srd(k, 4, 40, 0, D*D*2); srd(k, 8, sWS, WOF, WOF_SZ); srd(k, 12, sWS, ST, ST_SZ); srd(k, SYR, sWS, SY, SY_SZ); srd(k, 24, 24, 0, 256)
    V = Alloc(vT + 1); aM, aT, oT = V(), V(), V(3); mk = V(4, 2); dat = V(56, 2); assert V.p <= vTD, V.p
    zf = opt.get("z_full", 1); zz = dat
    k(f"v_mov_b32 v{mk}, 0")
    for r in range(4 * zf): k(f"v_mov_b32 v{zz+r}, 0")
    if ls:
        k(f"""s_cmp_lg_u32 s{sW}, 0
        s_cbranch_scc1 A_p1
        s_lshl_b32 s{sT}, s{sP}, 11
        s_add_u32 s{sT}, s{sT}, {F0*128}
        v_lshlrev_b32 v{t0}, 6, v{vL}""")
        sn = k.snapshot()
        if zf: k("\n".join(f"buffer_store_dwordx4 {v(zz,4)}, v{o16}, s[{SYR}:{SYR+3}], s{sT} offen offset:{1024*i} sc1" for i in range(2)))
        else: k(f"s_mov_b32 exec_hi, 0\nbuffer_store_dword v{mk}, v{t0}, s[{SYR}:{SYR+3}], s{sT} offen sc1")
        k(f"""s_mov_b64 exec, 1
        @vm0
        buffer_atomic_add v{vP}, off, s[24:27], 0 offset:128 sc1
        s_mov_b64 exec, -1
        A_p1:""")
        k.restore(sn); k.vm.append((set(), "z"))
    k(f"""s_mul_i32 s{sKX}, s{sW}, {13*1024}
    s_mul_i32 s{sKW}, s{sP}, 51200
    s_add_u32 s{sKW}, s{sKW}, s{sKX}""")
    for i in range(13):
        if i % 4 == 0: k(f"s_add_u32 m0, s{sKX}, {i*1024}\ns_add_u32 s{sT}, s{sKW}, {i*1024}")
        k(f"buffer_load_dwordx4 v{o16}, s[4:7], s{sT} offen offset:{1024*(i%4)} lds", "wo")
    k(f"""v_mov_b32 v{mk+1}, -1.0
    v_mov_b32 v{mk+2}, 0
    v_mov_b32 v{mk+3}, -1.0
    s_lshl2_add_u32 s{sT}, s{sP}, s{sW}
    s_lshl_b32 s{sT}, s{sT}, 11
    buffer_store_dwordx4 {v(mk,4)}, v{o16}, s[12:15], s{sT} offen sc1
    buffer_store_dwordx4 {v(mk,4)}, v{o16}, s[12:15], s{sT} offen offset:1024 sc1
    s_lshl_b32 s{sT}, s{sT}, 1
    s_lshr_b32 s{sT2}, s{sP}, 1
    s_cmp_eq_u32 s{sT2}, {F0 // 256}
    s_cselect_b32 s{sT}, {OOB}, s{sT}
    v_lshlrev_b32 v{t0}, 6, v{vL}""")
    if zf: k("\n".join(f"buffer_store_dwordx4 {v(zz,4)}, v{o16}, s[{SYR}:{SYR+3}], s{sT} offen offset:{1024*i} sc1" for i in range(4)))
    else: k(f"buffer_store_dword v{mk}, v{t0}, s[{SYR}:{SYR+3}], s{sT} offen sc1")
    srd(k, WR, WR, 0, S*F*2); srd(k, 20, 20, 0, S*F*2)
    c.maps(sT, sT2)
    c.touch_setup(vPF, sT)
    if opt.get("pf_rest"):
        lo, hi = opt["pf_rest"]
        n = (hi - lo + 65535) // 65536
        k(f"s_and_b32 s{sT}, s{sJ}, 1\ns_lshl_b32 s{sT}, s{sT}, 15\nv_lshlrev_b32 v{t1}, 7, v0\nv_add_u32 v{t1}, s{sT}, v{t1}")
        for i in range(n):
            k(f"v_add_u32 v{t0}, {lo + 65536*i}, v{t1}\nv_min_u32 v{t0}, {hi - 128}, v{t0}\nglobal_load_dword v{dat+52+i}, v{t0}, s[44:45]")
    k(f"""v_lshrrev_b32 v{t1}, 4, v{vL}
    v_bfe_u32 v{t0}, v{vL}, 2, 2
    v_and_b32 v{t3}, 3, v{vL}
    v_mul_u32_u24 v{aT}, 1280, v{t0}
    v_lshl_add_u32 v{aT}, v{t3}, 3, v{aT}
    v_lshrrev_b32 v{t0}, 1, v{t1}
    v_mul_u32_u24 v{t0}, {20*1280}, v{t0}
    v_and_b32 v{t3}, 1, v{t1}
    v_mul_u32_u24 v{t3}, {4*1280}, v{t3}
    v_add3_u32 v{aM}, v{aT}, v{t0}, v{t3}
    s_mul_i32 s{sT}, s{sW}, 320
    v_add_u32 v{aM}, s{sT}, v{aM}
    s_lshl_b32 s{sT}, s{sW}, 2
    v_add_u32 v{t1}, s{sT}, v{t1}
    v_lshl_add_u32 v{aT}, v{t1}, 5, v{aT}
    v_and_b32 v{t0}, 15, v{vL}
    v_lshlrev_b32 v{t0}, 4, v{t0}""")
    for m in range(3):
        k(f"""v_add_u32 v{t3}, {16*m}, v{t1}
        v_mul_u32_u24 v{oT+m}, 13108, v{t3}
        v_lshrrev_b32 v{oT+m}, 16, v{oT+m}
        v_mul_u32_u24 v{oT+m}, 95, v{oT+m}
        v_add_u32 v{oT+m}, v{oT+m}, v{t3}
        v_lshl_add_u32 v{oT+m}, v{oT+m}, 10, v{t0}""")
    k(f"""s_mul_i32 s{sKX}, s{sW}, 200
    s_mul_i32 s{sT}, s{sP}, 5
    s_add_u32 s{sKX}, s{sKX}, s{sT}
    s_lshl_b32 s{sKX}, s{sKX}, 10
    s_lshr_b32 s{sKW}, s{sP}, 2
    s_add_u32 s{sKW}, s{sKW}, 16
    s_mul_i32 s{sKW}, s{sKW}, 5120
    s_and_b32 s{sT}, s{sP}, 3
    s_lshl_b32 s{sT}, s{sT}, 8
    s_add_u32 s{sKW}, s{sKW}, s{sT}""")
    k.wait_tag("wo"); k("s_barrier")
    for i in range(10):
        for u in range(2): k(f"ds_read_b64_tr_b16 {v(dat+4*i+2*u,2)}, v{aM} offset:{u*8*1280 + i*32}")
        if i % 5 == 4:
            for ii in range(i - 4, i + 1):
                k(f"s_add_u32 s{sT}, s{sKX}, {((ii//5)*100 + ii%5)*1024}\nbuffer_store_dwordx4 {v(dat+4*ii,4)}, v{o16}, s[8:11], s{sT} offen sc1")
    for m in range(3):
        for u in range(2): k(f"ds_read_b64_tr_b16 {v(dat+40+4*m+2*u,2)}, v{aT} offset:{(16+20*u)*1280 + m*512}")
    for m in range(3):
        k(f"buffer_store_dwordx4 {v(dat+40+4*m,4)}, v{oT+m}, s[8:11], s{sKW} offen sc1")
    k.wait_all(); k("s_barrier")
    k(f"""s_cmp_eq_u32 s{sW}, 0
    s_cselect_b32 s{sT}, 0, {OOB}
    s_mov_b32 s{sFl}, {OOB}
    v_mov_b32 v{vD}, 0
    s_mov_b64 exec, 1
    buffer_atomic_add v{vP}, off, s[24:27], s{sT} sc1
    s_mov_b64 exec, -1""")
    st(3); c.b_early(t2)
    for i in range(0 if opt.get("t240") else len(ta)): k(c.touch(i, vPF, vTD, 100))
    if opt.get("p_t", 2):
        k(f"""s_lshr_b32 s{sT}, s{sP}, 2
        s_mul_i32 s{sT}, s{sT}, 224
        s_and_b32 s{sT2}, s{sP}, 3
        s_lshl2_add_u32 s{sT2}, s{sT2}, s{sW}
        s_add_u32 s{sT}, s{sT}, s{sT2}
        s_lshl_b32 s{sT}, s{sT}, 13
        v_lshl_add_u32 v{t0}, v{vL}, 7, s{sT}""")
        for b in range(opt.get("p_t", 2)): k(f"buffer_load_dword v{vTD}, v{t0}, s[20:23], 0 offen\nv_add_u32 v{t0}, {32*4096}, v{t0}")
    k.label("A_done")
    k.hist = []; k.vm = [({("v", r) for r in [vD] + list(range(vTD, 251))}, "A")]; k.lg = []
    k("s_nop 1"); c.x("ae1")
```

```python
from util import *

A = Alloc(0); sM = 48
VV = [[A(4), A(4)] for _ in range(10)]
half = A(2, 2); A(10)
QM = [0, A(4)]; QL = [0, A(4)]; QU = [0, A(4)]; KM = [0] * 10; KT = [0] * 5
for j in (8, 7, 6, 5, 4, 3, 2, 1, 9, 0):
    if j in (8, 7, 5, 3, 1): KT[j // 2] = A(4)
    KM[j] = A(4)
QM[0], QL[0], QU[0] = A(4), A(4), A(4)

def b_early(c, sMn):
    k = c.k
    k(f"v_mov_b32 v{sMn}, 0x3f803f80")
    for j in range(10):
        for t in range(2):
            for r in range(4): k(f"v_accvgpr_write_b32 a{VV[j][t]+r}, v{sMn}")
    k(f"v_accvgpr_write_b32 a{KT[4]+2}, 0")
    for p in range(5): k(f"v_accvgpr_write_b32 a{KT[p]+3}, 0")
    k(f"v_mov_b32 v{sMn}, 0x3f80")
    for q in range(2):
        for X in (QL, QU): k(f"v_accvgpr_write_b32 a{X[q]+2}, v{sMn}\nv_accvgpr_write_b32 a{X[q]+3}, 0")
    k(f"v_mov_b32 v{sMn}, 0xbf00bf00\nv_accvgpr_write_b32 a{half}, v{sMn}\nv_accvgpr_write_b32 a{half+1}, v{sMn}")
    for r in range(16):
        key = 8 * (r // 4) + r % 4
        k(f"s_mov_b32 s{sM+2*r}, {hex((0xffffffff << key) & 0xffffffff)}\ns_mov_b32 s{sM+2*r+1}, {hex((0xffffffff << (key+4)) & 0xffffffff)}")
Ctx.b_early = b_early

def phase_B(c):
    k, opt, st = c.k, c.opt, c.st
    sH, sT, sX, sO0, sO1, sT0, sT1, sK, sV, sKT, sQ, sQT, sWo, sXo, sE = 28, 29, 30, 31, 32, 33, 34, 35, 38, 39, 40, 41, 42, 43, 44
    V = Alloc(V0)
    aK, aT, aV, sMn, sTl = [V() for _ in range(5)]
    t0, t1, t2, oQL, oQU, vF, oX = 230, 231, 232, 233, 234, 235, 236
    srd(k, 4, 36, 0, S*D*2); srd(k, 8, sWS, OF, OF_SZ); srd(k, 12, sWS, QKV, QKV_SZ); srd(k, 16, sWS, WOF, WOF_SZ)
    if opt.get("b_map", 1): k(f"s_and_b32 s{sH}, s{sJ}, 3\ns_lshl2_add_u32 s{sH}, s{sXC}, s{sH}\ns_lshr_b32 s{sX}, s{sJ}, 2")
    else: k(f"s_mov_b32 s{sH}, s{sJ}\ns_mov_b32 s{sX}, s{sXC}")
    k(f"""s_lshr_b32 s{sQ}, s{sW}, 1
    s_lshl1_add_u32 s{sQ}, s{sX}, s{sQ}
    s_lshl1_add_u32 s{sK}, s{sX}, s{sW}
    s_sub_u32 s{sK}, s{sK}, 2
    s_cselect_b32 s{sT}, s{sQ}, s{sK}
    s_cselect_b32 s{sE}, {OOB}, 0
    s_cselect_b32 s{sK}, 0, s{sK}
    v_and_b32 v{t0}, 1, v{vL}
    v_mul_u32_u24 v{t0}, 19, v{t0}
    s_mul_i32 s{sT0}, s{sH}, 20
    v_add_u32 v{t0}, s{sT0}, v{t0}
    v_and_b32 v{t0}, 0x380, v{t0}
    v_lshrrev_b32 v{t1}, 1, v{vL}
    v_mul_u32_u24 v{t1}, 640, v{t1}
    s_lshl_b32 s{sT}, s{sT}, 11
    s_lshl_b32 s{sQ}, s{sQ}, 11
    v_mov_b32 v{t2}, s{sT}
    v_writelane_b32 v{t2}, s{sQ}, 0
    v_writelane_b32 v{t2}, s{sQ}, 1
    v_add3_u32 v{vF}, v{t0}, v{t1}, v{t2}
    s_mul_i32 s{sO0}, s{sH}, {HS}
    s_add_u32 s{sE}, s{sE}, s{sO0}
    s_mul_i32 s{sV}, s{sK}, 5120
    s_add_u32 s{sV}, s{sV}, s{sE}
    s_add_u32 s{sV}, s{sV}, {R_V}
    s_lshl_b32 s{sKT}, s{sK}, 10
    s_lshl2_add_u32 s{sK}, s{sKT}, s{sE}
    s_add_u32 s{sK}, s{sK}, {R_KM}
    s_add_u32 s{sKT}, s{sKT}, s{sE}
    s_add_u32 s{sKT}, s{sKT}, {R_KT}
    s_lshl2_add_u32 s{sT}, s{sX}, s{sW}
    s_lshl_b32 s{sQT}, s{sT}, 9
    s_lshl2_add_u32 s{sQ}, s{sQT}, s{sO0}
    s_add_u32 s{sQT}, s{sQT}, s{sO0}
    s_add_u32 s{sQT}, s{sQT}, {R_QT}
    v_lshrrev_b32 v{t0}, 5, v{vL}
    v_and_b32 v{t1}, 31, v{vL}
    v_lshlrev_b32 v{oQL}, 30, v{t0}
    v_lshl_add_u32 v{oQL}, v{t1}, 3, v{oQL}
    v_xor_b32 v{oQU}, 0x40000000, v{oQL}
    s_lshl_b32 s{sT0}, s{sW}, 11
    v_add_u32 v{aK}, s{sT0}, v{o16}
    s_lshl_b32 s{sT0}, s{sW}, 9
    s_add_u32 s{sT0}, s{sT0}, 36864
    v_lshl_add_u32 v{aT}, v{vL}, 3, s{sT0}
    s_mul_i32 s{sT0}, s{sW}, 2560
    s_add_u32 s{sT0}, s{sT0}, 16384
    v_mul_u32_u24 v{aV}, 320, v{t0}
    v_lshl_add_u32 v{aV}, v{t1}, 4, v{aV}
    v_add_u32 v{aV}, s{sT0}, v{aV}""")
    for m in range(3):
        k(f"""v_add_u32 v{t2}, {64*m}, v{vL}
        v_mul_u32_u24 v{t2}, 5462, v{t2}
        v_lshrrev_b32 v{t2}, 16, v{t2}
        v_mul_u32_u24 v{t2}, {1280-192}, v{t2}
        v_add_u32 v{oX+m}, v{o16}, v{t2}""")
    k(f"""s_mul_i32 s{sXo}, s{sCB}, 160
    s_andn2_b32 s{sXo}, s{sXo}, 32
    s_lshl2_add_u32 s{sT0}, s{sTB}, s{sW}
    s_mul_i32 s{sT0}, s{sT0}, 20480
    s_add_u32 s{sXo}, s{sXo}, s{sT0}
    s_mul_i32 s{sWo}, s{sCB}, 102400
    s_add_u32 s{sWo}, s{sWo}, s{sSL}""")
    def late():
        for p in range(4):
            k(f"s_cmp_ge_u32 s{sT}, {4-p}\ns_cselect_b32 s{sT0}, 0, 0xf149\nv_accvgpr_write_b32 a{KT[p]+2}, s{sT0}")
    MK = V(8); hi = V(); lo = t2
    ot = opt.get('o_tail', 1)
    def late2():
        k(f"v_mov_b32 v{lo}, 0xffff\nv_mov_b32 v{hi}, 0xffff0000")
        for p in range(8):
            k(f"v_cndmask_b32 v{MK+p}, 0, v{lo}, s[{sM+4*p}:{sM+4*p+1}]\nv_cndmask_b32 v{sMn}, 0, v{hi}, s[{sM+4*p+2}:{sM+4*p+3}]\nv_or_b32 v{MK+p}, v{MK+p}, v{sMn}")
        k(f"""v_bfe_u32 v{sMn}, v{vL}, 4, 1
        v_mul_u32_u24 v{sMn}, 20480, v{sMn}
        v_and_b32 v{t1}, 15, v{vL}
        v_lshl_add_u32 v{sTl}, v{t1}, {4 - ot}, v{sMn}
        v_lshl_add_u32 v{sMn}, v{t1}, 4, v{sMn}
        v_lshl_add_u32 v{sTl}, v{t0}, 30, v{sTl}
        v_lshl_add_u32 v{sMn}, v{t0}, 8, v{sMn}
        s_mul_i32 s{sO0}, s{sT}, 81920
        s_lshr_b32 s{sT0}, s{sH}, 1
        s_lshl_b32 s{sT0}, s{sT0}, 8
        s_and_b32 s{sT1}, s{sH}, 1
        s_lshl_b32 s{sT1}, s{sT1}, {7 if ot else 3}
        s_add_u32 s{sT0}, s{sT1}, s{sT0}
        s_add_u32 s{sT0}, s{sT0}, s{sO0}
        s_add_u32 s{sT0}, s{sT0}, 16384
        s_add_u32 s{sT1}, s{sT0}, 40960
        s_lshl_b32 s{sO1}, s{sH}, 9
        s_add_u32 s{sO0}, s{sO0}, s{sO1}
        s_add_u32 s{sO1}, s{sO0}, 40960
        s_lshl_b32 s{sFl}, s{sT}, 5
        s_add_u32 s{sFl}, s{sFl}, s{sH}
        s_add_u32 s{sFl}, s{sFl}, {F2}
        s_lshl_b32 s{sFl}, s{sFl}, 7
        s_mov_b32 s{sE}, 0xfffff
        s_mov_b32 s{sE+1}, 0xfffff""")
        c.w1_setup(t0, t1, t2, sX)
    late()
    st(4)
    k(f"v_cmp_gt_u32 vcc, 16, v{vP+1}\ns_cbranch_vccz B_ready\ns_mov_b32 s46, 0x40000")
    k.label("B_ask")
    k(f"""buffer_load_dword v{vP+1}, off, s[24:27], 0 sc1
    s_sub_u32 s46, s46, 1
    v_cmp_gt_u32 vcc, 16, v{vP+1}
    s_cbranch_scc1 B_ready
    s_cbranch_vccnz B_ask""")
    k.label("B_ready")
    k("s_barrier"); c.signal(); st(5)
    wo = []
    for g in range(6):
        wo.append([f"s_add_u32 m0, s{sSL}, {L_WO + 16384*g}"] + [(f"buffer_load_dwordx4 v{o16}, s[16:19], s{sWo} offen offset:{1024*i} sc1 lds", "wo") for i in range(4)]
                  + [f"s_add_u32 s{sWo}, s{sWo}, 16384"])
    wo.append([f"s_mul_i32 s46, s{sW}, 3072\ns_sub_u32 s{sWo}, s{sWo}, s46\ns_lshl_b32 s46, s{sW}, 10\ns_add_u32 m0, s46, {L_WO + 98304}", (f"buffer_load_dwordx4 v{o16}, s[16:19], s{sWo} offen sc1 lds", "wo")])
    k(f"s_mul_i32 s46, s{sW}, 3072\ns_add_u32 m0, s46, {L_X}")
    for m in range(3): k(f"buffer_load_dwordx4 v{oX+m}, s[4:7], s{sXo} offen offset:{1024*m} lds", "x")
    e0 = opt.get("wo_early", 2)
    for g in wo[:e0]: k.run(g)
    wo = wo[e0:]
    late2()
    c.poll(vF, 6); st(6)
    k(f"s_mov_b32 m0, s{sSL}")
    for i in range(4): k(f"buffer_load_dwordx4 v{o16}, s[12:15], s{sK} offen offset:{1024*i} sc1 lds", "K")
    k(f"s_lshl_b32 s46, s{sW}, 10\ns_add_u32 m0, s46, 36864\nbuffer_load_dwordx4 v{o16}, s[12:15], s{sKT} offen sc1 lds", "K")
    def ldQ(q):
        k(f"""buffer_load_dwordx4 {a(QM[q],4)}, v{o16}, s[12:15], s{sQ} offen offset:{1024*q} sc1
        buffer_load_dwordx2 {a(QL[q],2)}, v{oQL}, s[12:15], s{sQT} offen offset:{256*q} sc1
        buffer_load_dwordx2 {a(QU[q],2)}, v{oQU}, s[12:15], s{sQT} offen offset:{256*q} sc1""")
    ldQ(0)
    k(f"s_mul_i32 s46, s{sW}, 5120\ns_add_u32 m0, s46, 16384")
    for i in range(4): k(f"buffer_load_dwordx4 v{o16}, s[12:15], s{sV} offen offset:{1024*i} sc1 lds", "V")
    k(f"s_add_u32 m0, s46, {16384+4096}\ns_add_u32 s{sV}, s{sV}, 4096\nbuffer_load_dwordx4 v{o16}, s[12:15], s{sV} offen sc1 lds", "V")
    ldQ(1)
    for _ in range(opt.get("b_t", 0)): k(c.touch(c.nt, 251, 250, 46)); c.nt += 1
    k.wait_tag("K"); k("s_barrier"); st(7)
    mx = [V(2, 2), V(2, 2)]; mb = [V(2, 2), V(2, 2)]; rc = V(2, 2)
    P = [V(8, 2) for _ in range(3)]
    pool = []
    while V.p + 16 <= 250: pool.append(V(16, 2))
    MM, M8 = "v_mfma_f32_32x32x16_bf16", "v_mfma_f32_32x32x8_bf16"
    items = []
    free = list(pool)
    O = [free.pop(0), None]
    tile = [{}, {}]
    order = [[8, 0] + list(range(1, 8)), [9, 1] + list(range(2, 9))]
    for j in order[0]: tile[0][j] = free.pop(0)
    free.append(tile[0][0])
    free += [tile[0][j] for j in range(1, 8)] + [tile[0][8]]
    for j in order[1]:
        tile[1][j] = free.pop(0)
        if j == 1: free.insert(1, tile[1][1])
    O[1] = free.pop(0)
    def qk(q, pm, pv):
        first = True
        for x, j in enumerate(order[q]):
            T = tile[q][j]
            items.append((f"{MM} {v(T,16)}, {a(KM[j],4)}, {a(QM[q],4)}, 0", pm + x))
            items.append((f"{MM} {v(T,16)}, {a(KT[j//2],4)}, {a((QU if j % 2 else QL)[q],4)}, {v(T,16)}", pm + x))
            if x == 0: continue
            if x == 1:
                T = tile[q][8 + q]
                for r in range(16): items.append((f"v_cndmask_b32 v{T+r}, v{tile[q][j]+r}, v{T+r}, s[{sM+2*r}:{sM+2*r+1}]", pv + x))
            for p in range(8):
                m = mx[q] + p % 2
                if first and p < 2: items.append((f"v_max_f32 v{m}, v{T+2*p}, v{T+2*p+1}", pv + x))
                else: items.append((f"v_max3_f32 v{m}, v{m}, v{T+2*p}, v{T+2*p+1}", pv + x))
            first = False
        m, m1, b = mx[q], mx[q] + 1, mb[q]
        for tx in [f"v_max_f32 v{m}, v{m}, v{m1}", f"v_mov_b32 v{m1}, v{m}", f"v_permlane32_swap_b32 v{m}, v{m1}", f"v_max_f32 v{m}, v{m}, v{m1}",
                   f"v_and_b32 v{b}, v{hi}, v{m}", f"v_sub_f32 v{m}, v{m}, v{b}", f"v_and_b32 v{m1}, v{hi}, v{m}", f"v_sub_f32 v{m}, v{m}, v{m1}",
                   f"v_cvt_pk_bf16_f32 v{b}, v{b}, v{m1}", f"v_cvt_pk_bf16_f32 v{b+1}, v{m}, 0"]:
            items.append((tx, pv + 10))
    pn = [0]
    def pvblk(q, x, j, pm, pv):
        T = tile[q][j]; Pq = P[pn[0] % 3]; pn[0] += 1
        items.append((f"{M8} {v(T,16)}, {a(half,2)}, {v(mb[q],2)}, {v(T,16)}", pm + x))
        for p in range(8):
            items.append((f"v_exp_f32 v{T+2*p}, v{T+2*p}", pv + x)); items.append((f"v_exp_f32 v{T+2*p+1}, v{T+2*p+1}", pv + x))
            items.append((f"v_cvt_pk_bf16_f32 v{Pq+p}, v{T+2*p}, v{T+2*p+1}", pv + x - 0.5))
        def pvm(jj, R, first):
            for t in range(2):
                items.append((f"{MM} {v(O[q],16)}, {a(VV[jj][t],4)}, {v(R+4*t,4)}, {'0' if first and t == 0 else v(O[q],16)}", pm + x - 5))
        if j == 8 + q:
            Pd = P[pn[0] % 3]; pn[0] += 1
            for p in range(8):
                items.append((f"v_and_b32 v{Pd+p}, v{Pq+p}, v{MK+p}", pv + x - 0.5)); items.append((f"v_xor_b32 v{Pq+p}, v{Pq+p}, v{Pd+p}", pv + x - 0.5))
            pvm(j, Pd, False); pvm(q, Pq, False)
        else: pvm(j, Pq, x == 0)
    def fin(q, pv):
        o = O[q]
        items.append((f"v_rcp_f32 v{rc}, v{o+12}", pv))
        for r in range(12): items.append((f"v_mul_f32 v{o+r}, v{o+r}, v{rc}", pv))
        for p in range(6): items.append((f"v_cvt_pk_bf16_f32 v{o+p}, v{o+2*p}, v{o+2*p+1}", pv))
        items.append((f"buffer_store_dwordx4 {v(o,4)}, v{sMn}, s[8:11], s{sO0+q} offen {opt.get('loc_o', 'sc1')}", pv))
        items.append((f"buffer_store_dwordx2 {v(o+4,2)}, v{sTl}, s[8:11], s{sT0+q} offen {opt.get('loc_o', 'sc1')}", pv))
    rdK = lambda j: items.append((f"ds_read_b128 {a(KM[j],4)}, v{aK} offset:{1024*j}", -1))
    rdT = lambda p: items.append((f"ds_read_b64 {a(KT[p],2)}, v{aT} offset:{512*p}", -1))
    rdK(8); rdT(4); rdK(0); rdT(0); rdK(1)
    for p in (1, 2, 3): rdK(2*p); rdT(p); rdK(2*p+1)
    rdK(9)
    tv, tw, dw = opt.get("b_tv", 450), opt.get("b_tw", 600), opt.get("b_dw", 230)
    items.append(("@wait V\ns_barrier", -1, None, tv))
    vorder = [1, 2, 3, 4, 5, 6, 7, 0, 8, 9]
    for g in range(5):
        rd = "\n".join(f"ds_read_b128 {a(VV[j][t],4)}, v{aV} offset:{1280*j+640*t}" for j in vorder[2*g:2*g+2] for t in range(2))
        items.append((f"s_mov_b64 exec, s[{sE}:{sE+1}]\n{rd}\ns_mov_b64 exec, -1", -1, None, tv + 70 * g))
    wq = c.wq; wq.slots = [0, 1, 2]; wq.bufs = [("a", 240 - 16 * i) for i in range(5)]; assert A.p <= 176
    grp, t, cut2 = [], tw, 99; c.kb = 0
    for ch in opt.get("b_prog", "obdddooordrdrdo..rdrd"):
        if ch == ".": t += dw; continue
        if ch == "k":
            cut2 = len(grp); wq.bufs += [("a", 160 - 16 * i) for i in range(5)]; c.kb = 5; continue
        if ch == "t":
            grp.append((c.touch(c.nt, 251, 250, 46), -1, None, t)); c.nt += 1; continue
        g = joined(wo.pop(0) if ch == "o" else ["@lg0", "s_barrier"] if ch == "b" else wq.dma() if ch == "d" else wq.read())
        grp.append((g[0], -1, g[1], t)); t += dw if ch in "od" else 0 if ch == "b" else opt.get("b_dr", 130)
    assert not wo
    cut = opt.get("b_cut", 99)
    late_g = grp[cut2:]; grp = grp[:cut2]
    items += grp[:cut]
    qk(0, 0, 0)
    seq0 = list(range(1, 8)) + [8]
    for x, j in enumerate(seq0): pvblk(0, x, j, 100, 300)
    fin(0, 250)
    if late_g:
        n0 = opt.get("b_s0", 0); late_g = late_g[:n0] + items[-2:] + late_g[n0:]; del items[-2:]
    items += grp[cut:]
    qk(1, 200, 200)
    items += late_g
    seq1 = [2, 9] + list(range(3, 9))
    for x, j in enumerate(seq1): pvblk(1, x, j, 400, 500)
    fin(1, 600)
    sch = schedule(items, {}, t0=0)

    if opt.get("v"):
        print("B est", schedule.last_time, "last group", t)
        print(" ".join(f"{'S' if 'store' in x else 'r' if 'tr_b16' in x else 'd' if 'lds' in x else 'Q'}{int(tt)}" for tt, x in schedule.times if "store" in x or "tr_b16" in x or " lds" in x or a(QM[1],4) in x))
    k.run(sch)
    st(8)
```

```python
from util import *
Hp = V0

def phase_C(c):
    k, opt, st = c.k, c.opt, c.st
    sT, sT2, sO, sH4, sS, sN, sB = 28, 29, 30, 31, 32, 33, 34
    V = Alloc(V0 + 10); A = Alloc(0)
    t0, t1, aA, aB, aX, vF, oS, oP, oH, oH2 = [V() for _ in range(10)]
    acc = V(20, 2); npre = opt.get("c_pre", 10); fw = [V(20, 2) for _ in range(npre)]
    fo = [A(4) for _ in range(20)]
    k(f"""s_lshl2_add_u32 s{sB}, s{sTB}, s{sW}
    s_mul_i32 s{sO}, s{sB}, 20480
    v_add_u32 v{aA}, {L_WO}, v{o16}
    v_add_u32 v{aB}, {L_WO + 51200}, v{o16}
    s_lshl_b32 s{sT}, s{sTB}, 12
    s_add_u32 s{sT}, s{sT}, {F2*128}
    v_lshl_add_u32 v{vF}, v{vL}, 7, s{sT}
    s_mul_i32 s{sT}, s{sCB}, 160
    s_and_b32 s{sT2}, s{sT}, 32
    s_mul_i32 s{sT}, s{sW}, 3072
    s_add_u32 s{sT2}, s{sT2}, s{sT}
    s_add_u32 s{sT2}, s{sT2}, {L_X}
    v_lshrrev_b32 v{t0}, 2, v{vL}
    v_mul_u32_u24 v{aX}, 192, v{t0}
    v_and_b32 v{t1}, 3, v{vL}
    v_lshl_add_u32 v{aX}, v{t1}, 3, v{aX}
    v_add_u32 v{aX}, s{sT2}, v{aX}
    v_lshlrev_b32 v{t0}, 3, v{t0}
    v_lshl_add_u32 v{oP}, v{t1}, 7, v{t0}
    v_lshl_add_u32 v{oS}, v{t1}, 28, v{t0}
    v_lshrrev_b32 v{t0}, 5, v{vL}
    v_and_b32 v{t1}, 31, v{vL}
    v_lshlrev_b32 v{t1}, 4, v{t1}
    v_lshl_add_u32 v{oH2}, v{t0}, 10, v{t1}
    v_lshl_add_u32 v{oH}, v{t0}, 30, v{t1}
    s_lshr_b32 s{sN}, s{sB}, 1
    s_mul_i32 s{sN}, s{sN}, 40960
    s_mul_i32 s{sT2}, s{sCB}, 5120
    s_add_u32 s{sN}, s{sN}, s{sT2}
    s_and_b32 s{sT2}, s{sB}, 1
    s_lshl_b32 s{sT2}, s{sT2}, 9
    s_add_u32 s{sN}, s{sN}, s{sT2}
    s_add_u32 s{sH4}, s{sN}, 4096
    s_lshl_b32 s{sS}, s{sB}, 10
    s_lshl_b32 s{sT2}, s{sCB}, 7
    s_add_u32 s{sT2}, s{sT2}, s{sS}""")
    srd(k, 16, sWS, HNF, HF_SZ); srd(k, 12, sWS, ST, ST_SZ)
    xr = Hp
    k.wait_tag("x")
    for dt in range(5): k(f"ds_read_b64_tr_b16 {v(xr+2*dt,2)}, v{aX} offset:{32*dt}")
    for p in range(10): k(f"v_lshlrev_b32 v{acc+2*p}, 16, v{xr+p}\nv_and_b32 v{acc+2*p+1}, 0xffff0000, v{xr+p}")
    k(f"v_and_b32 v{aX}, 15, v{vL}\nv_lshlrev_b32 v{aX}, 3, v{aX}\nv_sub_u32 v{aX}, v{o16}, v{aX}")
    def reads(n):
        return [f"ds_read_b128 {v(fw[n%npre]+4*dt,4)}, v{aB if n >= 10 else aA} offset:{(n%10)*5120+1024*dt}" for dt in range(5)]
    k.wait_all(); c.signal(opt.get("loc_o", "sc1")); st(9)
    k(f"""s_barrier
    s_lshl3_add_u32 s{sFl}, s{sTB}, s{sCB}
    s_add_u32 s{sFl}, s{sFl}, {F3}
    s_lshl_b32 s{sFl}, s{sFl}, 7
    s_cmp_eq_u32 s{sW}, 0
    s_cselect_b32 s{sFl}, s{sFl}, {OOB}""")
    wq = c.wq; wq.bufs += [("a", 160 - 16 * i) for i in range(c.kb, 6)]
    wq.run(k, opt.get("s2_prog", "rrrddd"))
    nx = opt.get("s2_x", 0); nrd = [0, 1, 4, 8][nx]; early = [3, 4, 5][:nx]
    for n in range(npre):
        k.run(reads(n))
        if n == nrd - 1:
            k.wait_all(vm=False); k("s_barrier"); wq.slots += early; wq.run(k, "d" * nx)
    c.poll(vF, 32); st(10)
    lo = []
    for n in range(20):
        lo.append((f"s_add_u32 s{sO}, s{sO}, 4096\n" if n % 4 == 0 and n else "") + f"buffer_load_dwordx4 {a(fo[n],4)}, v{o16}, s[8:11], s{sO} offen offset:{1024*(n%4)} sc1")
    if opt.get('o_tail', 1):
        for n in range(16, 20):
            lo[n] = (f"s_add_u32 s{sO}, s{sO}, 4096\n" if n == 16 else "") + "\n".join(f"buffer_load_dwordx2 {a(fo[n]+2*z,2)}, v{aX}, s[8:11], s{sO} offen offset:{1024*(n%4)+128*z} sc1" for z in range(2))
    n0 = opt.get("c_lead", 8)
    k.run(lo[:n0]); lo = lo[n0:]
    for n in range(20):
        mf = [f"v_mfma_f32_16x16x32_bf16 {v(acc+4*dt,4)}, {a(fo[n],4)}, {v(fw[n%npre]+4*dt,4)}, {v(acc+4*dt,4)}" for dt in range(5)]
        fill = reads(n + npre - 1) if 0 < n and n + npre - 1 < 20 else []
        k.run(interleave(mf, lo[:1] + fill)); lo = lo[1:]
        if n == 0: st(11)
    st(12)
    s1, s2 = fw[0], fw[0] + 4; X = fw[0] + 8; Y = fw[0] + 12; Np = fw[1]; pl = fw[2]; mr = fw[2] + 4
    it = []
    for r in range(4):
        it.append(f"v_add_f32 v{s1+r}, v{acc+r}, v{acc+4+r}"); it.append(f"v_mul_f32 v{s2+r}, v{acc+r}, v{acc+r}")
    for dt in range(1, 5):
        for r in range(4):
            if dt > 1: it.append(f"v_add_f32 v{s1+r}, v{s1+r}, v{acc+4*dt+r}")
            it.append(f"v_fmac_f32 v{s2+r}, v{acc+4*dt+r}, v{acc+4*dt+r}")
    k.run(it)
    D_ = lambda d, x, ctl, bm: f"v_add_f32_dpp v{d}, v{x}, v{x} {ctl} row_mask:0xf bank_mask:{bm}"
    for i in range(2):
        for e, s_ in enumerate((s1, s2)): k(D_(X+2*e+i, s_+i, "row_ror:8", "0xf"))
    for i in range(2):
        for e, s_ in enumerate((s1, s2)): k(D_(X+2*e+i, s_+2+i, "row_ror:8", "0xc"))
    cv = [f"v_cvt_pk_bf16_f32 v{Hp+p}, v{acc+2*p}, v{acc+2*p+1}" for p in range(10)]
    for e in range(2): k(D_(Y+e, X+2*e, "row_half_mirror", "0xf"))
    k.run(cv[:1])
    for e in range(2): k(D_(Y+e, X+2*e+1, "row_half_mirror", "0xa"))
    k.run(cv[1:2])
    for e in range(2): k(D_(Y+e, Y+e, "quad_perm:[1,0,3,2]", "0xf"))
    k.run(cv[2:3])
    for e in range(2): k(D_(Y+e, Y+e, "quad_perm:[2,3,0,1]", "0xf"))
    k(f"buffer_store_dwordx2 {v(Y,2)}, v{oS}, s[12:15], s{sT2} offen {opt.get('loc_x', 'sc1')}")
    k.run(cv[3:])
    k("s_barrier")
    wq.slots = [x for x in range(3, 10) if x not in early] + wq.slots
    wq.run(k, opt.get("x_prog", "ddrrr"))
    k(f"s_mov_b32 s{sT}, 0x40000")
    k.label("C_poll")
    k(f"""buffer_load_dwordx2 {v(pl,2)}, v{oP}, s[12:15], s{sS} offen sc1
    buffer_load_dwordx2 {v(pl+2,2)}, v{oP}, s[12:15], s{sS} offen offset:512 sc1
    s_sub_u32 s{sT}, s{sT}, 1
    v_cmp_eq_u32 vcc, -1.0, v{pl+1}
    v_cmp_eq_u32 s[40:41], -1.0, v{pl+3}
    s_cbranch_scc1 C_go
    s_or_b64 vcc, vcc, s[40:41]
    s_cbranch_scc1 C_poll""")
    k.label("C_go")
    st(13)
    k(f"v_add_f32 v{pl}, v{pl}, v{pl+2}\nv_add_f32 v{pl+1}, v{pl+1}, v{pl+3}")
    for ctl in ("quad_perm:[1,0,3,2]", "quad_perm:[2,3,0,1]"):
        for e in range(2): k(D_(pl+e, pl+e, ctl, "0xf"))
    k(f"""v_mul_f32 v{pl}, {f32(-1/640)}, v{pl}
    v_mul_f32 v{pl+1}, {f32(1/640)}, v{pl+1}
    v_fma_f32 v{pl+1}, -v{pl}, v{pl}, v{pl+1}
    v_max_f32 v{pl+1}, 0, v{pl+1}
    v_add_f32 v{pl+2}, {f32(1e-5)}, v{pl+1}
    v_rsq_f32 v{pl+2}, v{pl+2}
    v_mov_b32 v{t0}, {f32(1e-5)}
    v_mul_f32 v{pl+1}, v{pl+1}, v{pl+2}
    v_fmac_f32 v{t0}, v{pl+1}, v{pl+2}
    v_rsq_f32 v{t0}, v{t0}
    v_mul_f32 v{pl+1}, v{pl+2}, v{t0}
    v_mul_f32 v{pl}, v{pl}, v{pl+1}""")
    for r in range(4): k(f"v_mov_b32_dpp v{mr+r}, v{pl+1} row_newbcast:{4*r} row_mask:0xf bank_mask:0xf")
    for r in range(4): k(f"v_mov_b32_dpp v{mr+4+r}, v{pl} row_newbcast:{4*r} row_mask:0xf bank_mask:0xf")
    for p in range(10): k(f"v_pk_fma_f32 {v(acc+2*p,2)}, {v(acc+2*p,2)}, {v(mr+2*(p%2),2)}, {v(mr+4+2*(p%2),2)}")
    for p in range(10): k(f"v_cvt_pk_bf16_f32 v{Np+p}, v{acc+2*p}, v{acc+2*p+1}")
    for pr in range(2):
        k(f"v_permlane32_swap_b32 v{Np+4*pr}, v{Np+4*pr+2}\nv_permlane32_swap_b32 v{Np+4*pr+1}, v{Np+4*pr+3}")
        k(f"buffer_store_dwordx4 {v(Np+4*pr,4)}, v{oH2}, s[16:19], s{sN} offen offset:{2048*pr} sc1", "hn")
    k(f"v_permlane32_swap_b32 v{Np+8}, v{Np+10}\nv_permlane32_swap_b32 v{Np+9}, v{Np+11}")
    k(f"buffer_store_dwordx4 {v(Np+8,4)}, v{oH}, s[16:19], s{sH4} offen sc1", "hn")
    st(14)
```

```python
from util import *
from pC import Hp
import math

def phase_DE(c):
    k, opt, st = c.k, c.opt, c.st
    nfl = opt.get("de_fl", 10); nring = nfl + 2; depth = (nfl + 4) // 5
    sT, sT2, sX, sW2, sO, sO2, sXE, sOE = 28, 29, 30, 31, 32, 33, 34, 35
    V = Alloc(V0 + 10); A = Alloc(0)
    t0, t1, t2, oXa, oXb, vF, oB = [V() for _ in range(7)]
    o2, aW, aR = V(4), V(8), V(4)
    bi = V(4, 2); bl = V(2, 2); idn = V(2, 2); oO = V(3); aT_, aT2 = V(), V()
    acc = V(80, 2); red = V(60, 2); pk = V(12, 2); fw = [V(16, 2), V(16, 2)]; assert V.p <= aW0
    fx = [A(4) for _ in range(max(nring, 5))]
    assert A.p <= 80
    wq = c.wq
    k(f"s_load_dwordx2 s[4:5], s[0:1], {KA_B1}\ns_load_dwordx2 s[24:25], s[0:1], {KA_B2}\ns_load_dwordx2 s[36:37], s[0:1], {KA_OUT}")
    wq.run(k, opt.get("cd_prog", "d"))
    w_offsets(k, o2, 4096, t0, t1, t2, sT, 448, sTB)
    for x in range(8): k(f"v_xor_b32 v{aW+x}, {65536*(1+x//4)}, v{aW0+x%4}")
    wq.aW += [aW, aW + 4]; wq.w2 = (o2, sW2); wq.bufs += [("v", b) for b in fw]
    k(f"""s_add_u32 s{sT}, s{sSL}, 32768
    v_add_u32 v{aR}, s{sT}, v{o16}
    s_mul_i32 s{sT}, s{sTB}, {opt.get("e_rot", 0)}
    s_bfe_u32 s{sT}, s{sT}, 0x40004
    s_min_u32 s{sT}, s{sT}, 13
    s_lshl_b32 s{sW2}, s{sT}, 17
    s_mul_i32 s{sXE}, s{sT}, 40960
    s_mul_i32 s{sT}, s{sFB}, {opt.get("d_rot", 0)}
    s_bfe_u32 s{sT}, s{sT}, 0x40004
    s_mul_i32 s{sX}, s{sT}, 40960
    s_mul_i32 s{sT}, s{sW}, {16*40960}
    s_mul_i32 s{sT2}, s{sDB}, 5120
    s_add_u32 s{sT}, s{sT}, s{sT2}
    v_add_u32 v{oXa}, s{sT}, v{o16}
    v_add_u32 v{oXb}, 4096, v{oXa}
    s_lshl_b32 s{sT}, s{sW}, 6
    s_add_u32 s{sT}, s{sT}, s{sDB}
    s_add_u32 s{sT}, s{sT}, {F3}
    s_lshl_b32 s{sT}, s{sT}, 7
    v_lshl_add_u32 v{vF}, v{vL}, 10, s{sT}""")
    for x in range(1, 4): k(f"v_xor_b32 v{aR+x}, {x*4096}, v{aR}")
    srd(k, 4, 4, 0, F*2); srd(k, 24, 24, 0, S*2); srd(k, 8, sWS, UF, UF_SZ); srd(k, 12, 36, 0, S*D*2)
    k.wait_tag("hn"); k("s_barrier"); c.signal(); st(15)
    k(f"s_cmp_ge_u32 s{sJ}, 27\ns_cbranch_scc1 D_skip")
    snap = k.snapshot(); wq.log = []
    k(f"""s_lshl_b32 s{sT}, s{sFB}, 7
    s_lshl_b32 s{sT2}, s{sW}, 5
    s_add_u32 s{sT}, s{sT}, s{sT2}
    v_lshlrev_b32 v{oB}, 3, v{t1}
    buffer_load_dwordx2 {v(bl,2)}, v{oB}, s[4:7], s{sT} offen""")
    wq.run(k, opt.get("s3_prog", "ddddrr"))
    k(f"""s_lshr_b32 s{sT}, s{sW}, 1
    s_lshl1_add_u32 s{sT}, s{sFB}, s{sT}
    s_mul_i32 s{sO}, s{sT}, 40960
    s_mul_i32 s{sT}, s{sDB}, 5120
    s_add_u32 s{sO}, s{sO}, s{sT}
    s_and_b32 s{sT}, s{sW}, 1
    s_lshl_b32 s{sT}, s{sT}, 9
    s_add_u32 s{sO}, s{sO}, s{sT}
    s_add_u32 s{sO2}, s{sO}, 4096
    v_lshrrev_b32 v{t0}, 5, v{vL}
    v_and_b32 v{t2}, 31, v{vL}
    v_lshlrev_b32 v{t2}, 4, v{t2}
    v_lshl_add_u32 v{oO}, v{t0}, 10, v{t2}
    v_lshl_add_u32 v{oO+1}, v{t0}, 30, v{t2}
    s_lshl3_add_u32 s{sFl}, s{sFB}, s{sDB}
    s_add_u32 s{sFl}, s{sFl}, {F4}
    s_lshl_b32 s{sFl}, s{sFl}, 7
    s_cmp_eq_u32 s{sW}, 0
    s_cselect_b32 s{sFl}, s{sFl}, {OOB}""")

    def gemm(E, s0):
        nst, r, sx, q0 = (14, 8, sXE, 16) if E else (16, 16, sX, 0)
        def loadX(n):
            if n >= 5 * nst: return []
            dt = n % 5
            it = f"buffer_load_dwordx4 {a(fx[n%nring],4)}, v{oXb if dt == 4 else oXa}, s[{r}:{r+3}], s{sx} offen offset:{1024*(dt%4)} sc1"
            if dt < 4: return [it]
            if opt.get("e_rot" if E else "d_rot"): return [it, f"s_add_u32 s{sx}, s{sx}, 40960\ns_cmp_eq_u32 s{sx}, {40960*nst}\ns_cselect_b32 s{sx}, 0, s{sx}"]
            return [it, f"s_add_u32 s{sx}, s{sx}, 40960"]
        assert wq.nr > q0
        c.poll(vF, 7 if E else 8); st(s0)
        if not E:
            pass
        for n in range(nfl): k.run(loadX(n))
        if not E:
            for p in range(2): k(f"v_lshlrev_b32 v{bi+2*p}, 16, v{bl+p}\nv_and_b32 v{bi+2*p+1}, 0xffff0000, v{bl+p}")
            c0 = -2 * math.sqrt(2 / math.pi) * math.log2(math.e)
            k(f"s_mov_b32 s44, {f32(c0*0.044715)}\ns_mov_b32 s45, s44\nv_mov_b32 v{bl}, {f32(c0)}\nv_mov_b32 v{bl+1}, v{bl}")
        lead = opt.get("w_lead", 4); hold = False; landed = [wq.nd] * depth
        for i in range(nst):
            mf = []
            order = [(x, dt) for dt in range(5) for x in (1, 2, 3)] + [(0, dt) for dt in range(5)] if i == nst - 1 else [(x, dt) for dt in range(5) for x in range(4)]
            for x, dt in order:
                X, W, T = a(fx[(5*i+dt)%nring],4), wq.frag(q0 + i, x), v(acc+20*x+4*dt,4)
                cc = T if (i or (E and x == 0)) else (v(bi,4) if x == 0 else "0")
                mf.append(f"v_mfma_f32_16x16x32_bf16 {T}, {X if E else W}, {W if E else X}, {cc}")
            ld = []
            if i == nst - 6: hold = True
            if hold: wq.slots = [x for x in wq.slots if x not in (2, 3, 4, 5)]
            n0 = wq.nd
            if wq.nd <= q0 + i + lead and wq.nd < q0 + nst or i >= nst - opt.get("w2_d", depth): ld += wq.dma()
            if i < nst - 1:
                rd = wq.read() if wq.nr < n0 and (wq.nr <= q0 + i + 1 or wq.nr < landed[0]) else []
                assert wq.nr > q0 + i + 1
                fill = ld + rd; seq = []
                for dt in range(5):
                    part = fill[len(fill)*dt//5:len(fill)*(dt+1)//5]
                    seq += interleave(mf[4*dt:4*dt+4], loadX(5*i + dt + nfl) + part)
                k.run(seq)
                landed = landed[1:] + [n0]
            else:
                assert all(wq.slot[q] not in (2, 3, 4, 5) for q in range(wq.nr, wq.nd))
                wr = [f"ds_write_b128 v{aR}, {v(acc+20*x+4*dt,4)} offset:{(((x-1)*5+dt)//4)*16384 + (((x-1)*5+dt)%4)*1024}" for x, dt in order[:15]]
                k.run(interleave(mf[:3], ld) + interleave(mf[3:18], wr) + mf[18:])
            wq.done(q0 + i)
            if i == 0: st(s0 + 1)
        st(s0 + 2)
        k.wait_all(vm=False); k("s_barrier")
    def reduce_items():
        it = []
        for dt in range(5):
            for x in (1, 2, 3):
                n = (x - 1) * 5 + dt
                it.append((f"ds_read_b128 {v(red+20*(x-1)+4*dt,4)}, v{aR+x} offset:{(n//4)*16384 + (n%4)*1024}", -1))
        return it
    def add(dt):
        it = []
        for p in range(2):
            r = 4 * dt + 2 * p
            it += [f"v_pk_add_f32 {v(acc+r,2)}, {v(acc+r,2)}, {v(red+r,2)}", f"v_pk_add_f32 {v(red+20+r,2)}, {v(red+20+r,2)}, {v(red+40+r,2)}"]
        for p in range(2):
            r = 4 * dt + 2 * p
            it += [f"v_pk_add_f32 {v(acc+r,2)}, {v(acc+r,2)}, {v(red+20+r,2)}"]
        return it
    def e_setup():
        k(f"""s_lshl_b32 s{sT}, s{sTB}, 7
        s_lshl_b32 s{sT2}, s{sW}, 5
        s_add_u32 s{sT}, s{sT}, s{sT2}
        v_and_b32 v{t0}, 15, v{vL}
        v_lshlrev_b32 v{oB}, 1, v{t0}
        buffer_load_ushort v{bl}, v{oB}, s[24:27], s{sT} offen
        s_mul_i32 s{sT}, s{sW}, {14*40960}
        s_mul_i32 s{sT2}, s{sCB}, 5120
        s_add_u32 s{sT}, s{sT}, s{sT2}
        v_add_u32 v{oXa}, s{sT}, v{o16}
        v_add_u32 v{oXb}, 4096, v{oXa}
        s_mul_i32 s{sT}, s{sW}, 7
        v_add_u32 v{vF}, s{sT}, v{vL}
        v_min_u32 v{vF}, 26, v{vF}
        s_add_u32 s{sT}, s{sCB}, {F4}
        s_lshl_b32 s{sT}, s{sT}, 7
        v_lshl_add_u32 v{vF}, v{vF}, 10, s{sT}
        v_lshlrev_b32 v{t2}, 2, v{t1}
        v_sub_u32 v{t0}, v{t0}, v{t2}
        v_mov_b32 v{t2}, 0x3f80""")
        for p in range(2):
            k(f"""v_cmp_eq_u32 vcc, {2*p}, v{t0}
            v_cndmask_b32 v{idn+p}, 0, v{t2}, vcc
            v_cmp_eq_u32 vcc, {2*p+1}, v{t0}
            v_cndmask_b32_e64 v{idn+p}, v{idn+p}, 1.0, vcc""")
        k(f"""s_mul_i32 s{sOE}, s{sCB}, 160
        s_and_b32 s{sT2}, s{sOE}, 32
        s_sub_u32 s{sOE}, s{sOE}, s{sT2}
        s_lshl2_add_u32 s{sT}, s{sTB}, s{sW}
        s_mul_i32 s{sT}, s{sT}, 20480
        s_add_u32 s{sOE}, s{sOE}, s{sT}
        v_add_u32 v{aT2}, s{sSL}, v{o16}
        s_add_u32 s{sT}, s{sSL}, s{sT2}
        v_mul_u32_u24 v{aT_}, 96, v{oB}
        v_lshl_add_u32 v{aT_}, v{t1}, 3, v{aT_}
        v_add_u32 v{aT_}, s{sT}, v{aT_}
        s_lshr_b32 s{sT2}, s{sT2}, 4""")
        for m in range(3):
            k(f"""v_add_u32 v{t0}, {64*m}, v{vL}
            v_mul_u32_u24 v{t2}, 5462, v{t0}
            v_lshrrev_b32 v{t2}, 16, v{t2}
            v_mul_u32_u24 v{oO+m}, {1280-192}, v{t2}
            v_lshl_add_u32 v{oO+m}, v{t0}, 4, v{oO+m}
            v_mul_u32_u24 v{t2}, 12, v{t2}
            v_sub_u32 v{t0}, v{t0}, v{t2}
            v_subrev_u32 v{t0}, s{sT2}, v{t0}
            v_cmp_gt_u32 vcc, 10, v{t0}
            v_mov_b32 v{t2}, 0x40000000
            v_cndmask_b32 v{oO+m}, v{t2}, v{oO+m}, vcc""")

    if opt.get("v"): print("staged before D:", wq.nd, wq.nr)
    gemm(False, 16)
    wq.slots = [x for x in wq.slots if x not in (2, 3, 4, 5)]
    items = reduce_items()
    for n, ch in enumerate(opt.get("de_prog", "dd")):
        g = joined(wq.dma() if ch == "d" else wq.read()); items.append((g[0], -1, g[1], opt.get("de_t0", 100) + n * opt.get("de_dt", 200)))
    for dt in range(5):
        it = add(dt)
        r = 4 * dt; z = red + r
        for p in (0, 2): it.append(f"v_pk_mul_f32 {v(z+p,2)}, {v(acc+r+p,2)}, {v(acc+r+p,2)}")
        for p in (0, 2): it.append(f"v_pk_fma_f32 {v(z+p,2)}, {v(z+p,2)}, s[44:45], {v(bl,2)}")
        for p in (0, 2): it.append(f"v_pk_mul_f32 {v(z+p,2)}, {v(z+p,2)}, {v(acc+r+p,2)}")
        for p in range(4): it.append(f"v_exp_f32 v{z+p}, v{z+p}")
        for p in (0, 2): it.append(f"v_pk_add_f32 {v(z+p,2)}, {v(z+p,2)}, 1.0 op_sel_hi:[1,0]")
        for p in range(4): it.append(f"v_rcp_f32 v{z+p}, v{z+p}")
        for p in (0, 2): it.append(f"v_pk_mul_f32 {v(z+p,2)}, {v(z+p,2)}, {v(acc+r+p,2)}")
        for p in range(2): it.append(f"v_cvt_pk_bf16_f32 v{pk+2*dt+p}, v{z+2*p}, v{z+2*p+1}")
        items += [(x, dt) for x in it]
        if dt % 2 == 1 or dt == 4:
            b = pk + 4 * (dt // 2)
            items += [(f"v_permlane32_swap_b32 v{b}, v{b+2}", dt), (f"v_permlane32_swap_b32 v{b+1}, v{b+3}", dt)]
            if dt < 4: items.append((f"buffer_store_dwordx4 {v(b,4)}, v{oO}, s[8:11], s{sO} offen offset:{2048*(dt//2)} sc1", dt, "u"))
            else: items.append((f"buffer_store_dwordx4 {v(b,4)}, v{oO+1}, s[8:11], s{sO2} offen sc1", dt, "u"))
    k.run(schedule(items))
    if opt.get("v"): print("D epilogue est", schedule.last_time)
    st(19)
    wq.run(k, opt.get("dd_prog", "dd"))
    k.label("E_join")
    replay = [it for q, its in wq.log if q >= 16 for it in its]
    e_setup()
    k.wait_tag("u"); k("s_barrier"); c.signal(); st(20)
    wq.slots = [2, 3, 4, 5] + wq.slots
    wq.run(k, opt.get("s4_prog", "ddddrrdd"))
    if opt.get("v"): print("staged before E:", wq.nd - 16, wq.nr - 16)
    k(f"v_lshlrev_b32 v{bi}, 16, v{bl}")
    for r in range(1, 4): k(f"v_mov_b32 v{bi+r}, v{bi}")
    for dt in range(5): k(f"v_mfma_f32_16x16x16_bf16 {v(acc+4*dt,4)}, {v(Hp+2*dt,2)}, {v(idn,2)}, {v(bi,4)}")
    gemm(True, 21)
    items = reduce_items()
    for dt in range(5):
        it = add(dt) + [f"v_cvt_pk_bf16_f32 v{pk+2*dt+p}, v{acc+4*dt+2*p}, v{acc+4*dt+2*p+1}" for p in range(2)]
        items += [(x, dt) for x in it + [f"ds_write_b64 v{aT_}, {v(pk+2*dt,2)} offset:{32*dt}"]]
    k.run(schedule(items))
    for m in range(3): k(f"ds_read_b128 {v(red+4*m,4)}, v{aT2} offset:{1024*m}")
    for m in range(3): k(f"buffer_store_dwordx4 {v(red+4*m,4)}, v{oO+m}, s[12:15], s{sOE} offen {opt.get('out_fl', '')}")
    st(24)
    if c.on: k.wait_all(); st(25)
    c.flush()
    k.label("K_exit")
    k("s_endpgm")
    k.restore(snap); k.label("D_skip")
    if opt.get("ds_t", 1):
        k(f"""v_lshrrev_b32 v{t0}, 2, v{vL}
        v_and_b32 v{t2}, 3, v{vL}
        v_lshlrev_b32 v{t2}, 7, v{t2}
        v_lshl_add_u32 v{t0}, v{t0}, 12, v{t2}
        s_lshr_b32 s{sT}, s{sTB}, 2
        s_lshl_b32 s{sT}, s{sT}, 9
        v_add_u32 v{t0}, s{sT}, v{t0}
        s_sub_u32 s{sO}, s{sJ}, 27
        s_lshl2_add_u32 s{sO}, s{sO}, s{sW}
        s_add_u32 s{sO}, s{sO}, {8 * opt.get("ds_0", 2)}""")
        for i in range((112 - 8 * opt.get("ds_0", 2) + 19) // 20):
            k(f"""s_lshr_b32 s{sT}, s{sO}, 3
            s_lshl_b32 s{sT}, s{sT}, 1
            s_and_b32 s{sT2}, s{sO}, 1
            s_add_u32 s{sT}, s{sT}, s{sT2}
            s_bfe_u32 s{sT2}, s{sO}, 0x20001
            s_mul_i32 s{sT2}, s{sT2}, 28
            s_add_u32 s{sT}, s{sT}, s{sT2}
            s_lshl_b32 s{sT}, s{sT}, 16
            v_add_u32 v{t2}, s{sT}, v{t0}
            buffer_load_dword v{vTD}, v{t2}, s[20:23], 0 offen
            s_add_u32 s{sO}, s{sO}, 20""")
    k.wait_all()
    k.run(replay)
    k(f"s_mov_b32 s{sFl}, {OOB}")
    k.wait_all()
    k("s_branch E_join")
```

```python
from asm import *
from layout import *
import struct

def srd(k, r, src, off, size):
    if src == 86 and off != TS: off += srd.shift.get(str(off), srd.shift.get("*", 0))
    if off:
        k(f"s_add_u32 s{r}, s{src}, {hex(off)}\ns_addc_u32 s{r+1}, s{src+1}, 0")
    elif src != r:
        k(f"s_mov_b32 s{r}, s{src}\ns_mov_b32 s{r+1}, s{src+1}")
    k(f"s_mov_b32 s{r+2}, {hex(size)}\ns_mov_b32 s{r+3}, 0x20000")

srd.shift = {}
def f32(x): return hex(struct.unpack("<I", struct.pack("<f", x))[0])

sW, sXC, sJ = 3, 84, 85
SYR = 80
sWS = 86
WR = 88
sWt, sSL = 92, 93
sTB, sCB, sDB, sFB = 94, 95, 98, 99
sFl = 47
vL, o16, vST, vP = 1, 2, 3, 4
oW = 6
vTD = 250
aW0 = 252
V0 = 10
LDS_ALL = 163840
L_X, L_WO = 49152, 61440
OOB = 0x30000000

class Ctx:
    def __init__(self, opt):
        self.opt, self.k, self.np = opt, K(), 0
        srd.shift = opt.get("wso", {})
        self.on = opt.get("stamp"); self.wq = WQ()
    def st(self, i):
        if not self.on: return
        self.k(f"{'s_memtime' if self.on == 2 else 's_memrealtime'} s[96:97]\nv_writelane_b32 v{vST}, s96, {i}")
    def x(self, name):
        xs = self.opt.get("xs", [])
        if name in xs: self.st(26 + xs.index(name))
    def flush(self):
        if not self.on: return
        k = self.k
        srd(k, 4, sWS, TS, 0x40000)
        k(f"s_lshl2_add_u32 s28, s2, s{sW}\ns_lshl_b32 s28, s28, 8\nv_lshlrev_b32 v{vP}, 2, v{vL}\nbuffer_store_dword v{vST}, v{vP}, s[4:7], s28 offen")
    def signal(self, fl="sc1"):
        self.k(f"""s_mov_b64 exec, 1
        buffer_store_dword v{vP}, off, s[{SYR}:{SYR+3}], s{sFl} {fl}
        s_mov_b64 exec, -1""")
    def poll(self, voff, lanes, sc=46):
        k = self.k; n = self.np; self.np += 1
        k(f"s_mov_b32 exec_lo, {(1 << lanes) - 1}\ns_mov_b32 exec_hi, 0\ns_mov_b32 s{sc}, 0x40000")
        k.label(f"poll{n}")
        k(f"""buffer_load_dword v{vP+1}, v{voff}, s[{SYR}:{SYR+3}], 0 offen sc1
        s_sub_u32 s{sc}, s{sc}, 1
        v_cmp_ne_u32 vcc, v{vP}, v{vP+1}
        s_cbranch_scc1 pollx{n}""")
        if self.opt.get("diag_sl"): k(f"s_cbranch_vccz pollx{n}\ns_sleep {self.opt['diag_sl']}")
        k(f"s_cbranch_vccnz poll{n}")
        k.label(f"pollx{n}")
        k("s_mov_b64 exec, -1")
    def maps(self, sT, sT2):
        m = self.opt.get("m", 8); lm = m.bit_length() - 1
        self.k(f"""s_and_b32 s{sT}, s{sXC}, {8 // m - 1}
        s_lshl_b32 s{sT}, s{sT}, {lm}
        s_lshr_b32 s{sT2}, s{sXC}, {3 - lm}
        s_and_b32 s{sCB}, s{sJ}, {m - 1}
        s_add_u32 s{sCB}, s{sCB}, s{sT}
        s_lshl_b32 s{sTB}, s{sT2}, 5
        s_add_u32 s{sTB}, s{sTB}, s{sJ}
        s_lshr_b32 s{sTB}, s{sTB}, {lm}
        s_mul_i32 s{sFB}, s{sT2}, 27
        s_add_u32 s{sFB}, s{sFB}, s{sJ}
        s_and_b32 s{sDB}, s{sFB}, {m - 1}
        s_add_u32 s{sDB}, s{sDB}, s{sT}
        s_lshr_b32 s{sFB}, s{sFB}, {lm}
        s_lshl_b32 s{sSL}, s{sW}, 12""")
    def touch_setup(self, vt, sT, sid=2):
        n = self.opt.get("tn", 2); self.tl = 58 if self.opt.get("t240") else 54; per = self.tl // n
        if self.opt.get("th"):
            self.k(f"v_min_u32 v{vt}, 26, v{vL}\ns_and_b32 s{sT}, s2, 0xc0\ns_add_u32 s{sT}, s{sT}, s2\ns_lshl2_add_u32 s{sT}, s{sT}, s{sW}\ns_mul_i32 s{sT}, s{sT}, 27\nv_add_lshl_u32 v{vt}, v{vt}, s{sT}, 7")
            return
        self.k(f"v_min_u32 v{vt}, {per - 1}, v{vL}\ns_mul_i32 s{sT}, s{sid}, {4 * self.tl}\nv_add_u32 v{vt}, s{sT}, v{vt}\ns_mul_i32 s{sT}, s{sW}, {per}\nv_add_lshl_u32 v{vt}, v{vt}, s{sT}, 7")
    def touch(self, i, vt, dst, st):
        n = self.opt.get("tn", 2); r = WR if i < n else 20
        if self.opt.get("th"): return f"s_mov_b32 s{st}, {(i % 2) * 256 * 3456}\nbuffer_load_dword v{dst}, v{vt}, s[{r}:{r+3}], s{st} offen"
        return f"s_movk_i32 s{st}, {(i % n) * (4 * self.tl // n) * 128}\nbuffer_load_dword v{dst}, v{vt}, s[{r}:{r+3}], s{st} offen"
    def w1_setup(self, t0, t1, t2, sT):
        k = self.k
        w_offsets(k, oW, 3456, t0, t1, t2, sT, 512, sFB)
        k(f"""s_mul_i32 s{sT}, s{sFB}, {self.opt.get("d_rot", 0)}
        s_bfe_u32 s{sT}, s{sT}, 0x40004
        s_mul_i32 s{sWt}, s{sT}, {32*3456}
        s_cmp_ge_u32 s{sJ}, 27
        s_cselect_b32 s{WR+2}, 0, s{WR+2}""")
        k(f"""v_bfe_u32 v{t0}, v{vL}, 2, 3
        v_lshrrev_b32 v{t2}, 5, v{vL}
        v_lshl_add_u32 v{t2}, v{t2}, 4, v{t0}
        v_lshlrev_b32 v{t2}, 7, v{t2}
        v_lshrrev_b32 v{t0}, 1, v{t0}
        v_xor_b32 v{t0}, s{sW}, v{t0}
        v_lshl_add_u32 v{t2}, v{t0}, 5, v{t2}
        v_and_b32 v{t0}, 3, v{vL}
        v_lshl_add_u32 v{t2}, v{t0}, 3, v{t2}
        v_add_u32 v{aW0}, s{sSL}, v{t2}""")
        for x in range(1, 4): k(f"v_xor_b32 v{aW0+x}, {32*x}, v{aW0}")

class WQ:
    def __init__(self):
        self.nd = self.nr = 0
        self.slots, self.bufs = [], []
        self.slot, self.buf, self.last = {}, {}, {}
        self.aW = [aW0]; self.w2 = None; self.log = []
    def dma(self, n=1):
        out = []
        for _ in range(n):
            q = self.nd
            if q == 30 or not self.slots or (q >= 16 and not self.w2): break
            sl = self.slots.pop(0); self.slot[q] = sl; self.nd += 1
            it = [f"@wait r{self.last[sl]}"] if sl in self.last else []
            it += load_w(q, sl, oW, WR, sWt, 32*3456, 16, "w") if q < 16 else load_w(q, sl, self.w2[0], 20, self.w2[1], 32*4096, 14, "w")
            self.log.append((q, it)); out += it
        return out
    def read(self, n=1):
        out = []
        for _ in range(n):
            q = self.nr
            if q == self.nd or not self.bufs or self.slot[q] // 4 >= len(self.aW): break
            b = self.bufs.pop(0); self.buf[q] = b; sl = self.slot[q]; self.nr += 1
            it = [f"@wait w{q}"] + [(f"ds_read_b64_tr_b16 {b[0]}[{b[1]+4*x+2*u}:{b[1]+4*x+2*u+1}], v{self.aW[sl//4]+x} offset:{(sl%4)*16384 + 1024*u}", f"r{q}") for x in range(4) for u in range(2)]
            self.slots.append(sl); self.last[sl] = q
            self.log.append((q, it)); out += it
        return out
    def frag(self, q, x): b = self.buf[q]; return f"{b[0]}[{b[1]+4*x}:{b[1]+4*x+3}]"
    def done(self, q): self.bufs.append(self.buf[q])
    def run(self, k, prog):
        for ch in prog: k.run(self.dma() if ch == "d" else self.read())

def w_offsets(k, o, RS, t0, t1, t2, sT, rows, sN):
    k(f"""v_lshrrev_b32 v{t0}, 3, v{vL}
    v_mul_u32_u24 v{t0}, {RS}, v{t0}
    v_lshrrev_b32 v{t1}, 4, v{vL}
    v_lshlrev_b32 v{t2}, 1, v{t1}
    v_xor_b32 v{t2}, v{t2}, v{vL}
    v_and_b32 v{t2}, 7, v{t2}
    v_lshl_add_u32 v{o}, v{t2}, 4, v{t0}
    s_mul_i32 s{sT}, s{sW}, {rows*RS}
    v_add_u32 v{o}, s{sT}, v{o}
    s_lshl_b32 s{sT}, s{sN}, 7
    v_add_u32 v{o}, s{sT}, v{o}""")
    for n in range(1, 4): k(f"v_add_u32 v{o+n}, {n*(8*RS-1024)}, v{o}")

def load_w(i, slot, o, r, so, step, nst, tag):
    it = [f"s_add_u32 m0, s{sSL}, {slot*16384}"]
    it += [(f"buffer_load_dwordx4 v{o+n}, s[{r}:{r+3}], s{so} offen offset:{1024*n} lds", f"{tag}{i}") for n in range(4)]
    it += [f"s_add_u32 s{so}, s{so}, {step}\ns_cmp_eq_u32 s{so}, {step*nst}\ns_cselect_b32 s{so}, 0, s{so}"]
    return it
def joined(items):
    return "\n".join(x[0] if isinstance(x, tuple) else x for x in items), next((x[1] for x in items if isinstance(x, tuple)), None)
```
